```python
import torch

def _softmax(x, axis=-1):
    return torch.softmax(x, dim=axis)
def _gelu(x):
    return torch.nn.functional.gelu(x, approximate="tanh")
def _silu(x):
    return torch.nn.functional.silu(x)
def _sigmoid(x):
    return torch.sigmoid(x)
def _layernorm(x, axis=-1, eps=1e-5):
    m = x.mean(dim=axis, keepdim=True)
    v = x.var(dim=axis, keepdim=True, unbiased=False)
    return (x - m) / torch.sqrt(v + eps)
def _scatter_add(tgt, idx, src, axis=0):
    return tgt.clone().index_add_(axis, idx, src)
def _segment_sum(src, seg, n):
    out = torch.zeros((n,) + src.shape[1:], dtype=src.dtype)
    return out.index_add_(0, seg, src)
def _pad(x, pw):
    flat = tuple(v for pair in reversed(pw) for v in pair)
    return torch.nn.functional.pad(x, flat)

kernel_name = 'gated_mix__sliding_block__dense_activation_silu__prompt'

def setup_inputs():

    _w = (lambda a: (lambda t: t.to(torch.bfloat16) if t.is_floating_point() else t)(torch.as_tensor(a)))
    def _A_setup():
        B, S, D = 1, 2048, 576
        return {
            "x": _w((lambda *s: torch.randn(*s, dtype=torch.bfloat16) * 0.2)(B, S, D)),
            "wqkv": _w((lambda *s: torch.randn(*s, dtype=torch.bfloat16) * 0.2)(D, 3 * D)),
            "wo": _w((lambda *s: torch.randn(*s, dtype=torch.bfloat16) * 0.2)(D, D)),
        }
    _A_in = _A_setup()

    def _B_setup():
        B, S, D, F = 1, 2048, 576, 4608
        return {
            "x": _w((lambda *s: torch.randn(*s, dtype=torch.bfloat16) * 0.2)(B, S, D)),
            "w1": _w((lambda *s: torch.randn(*s, dtype=torch.bfloat16) * 3.2)(D, F) * (D ** -0.5)),
            "w2": _w((lambda *s: torch.randn(*s, dtype=torch.bfloat16) * 3.2)(F, D) * (F ** -0.5)),
        }
    _B_in = _B_setup()

    return {
        "A_x": _A_in["x"],
        "A_wqkv": _A_in["wqkv"],
        "A_wo": _A_in["wo"],
        "B_x": _B_in["x"],
        "B_w1": _B_in["w1"],
        "B_w2": _B_in["w2"],
        "gate_w": _w((lambda *s: torch.randn(*s, dtype=torch.bfloat16) * 0.2)(576) * 16.0),
    }

def reference(A_x, A_wqkv, A_wo, B_x, B_w1, B_w2, gate_w):
    def _A_ref(x, wqkv, wo):
        B, S, D = x.shape
        H = 32; Dh = D // H; W = 256
        qkv = (lambda x, *d: x.permute(*d))((x @ wqkv).reshape(B, S, 3, H, Dh), 2, 0, 3, 1, 4)
        q, k, v = qkv[0], qkv[1], qkv[2]
        scores = torch.einsum("bhqd,bhkd->bhqk", q, k) * (Dh ** -0.5)
        idx = torch.arange(S)
        mask = (idx[:, None] - idx[None, :] >= 0) & (idx[:, None] - idx[None, :] < W)
        scores = torch.where(mask[None, None], scores, -1e9)
        p = _softmax(scores, axis=-1)
        o = torch.einsum("bhqk,bhkd->bhqd", p, v)
        return (lambda x, *d: x.permute(*d))(o, 0, 2, 1, 3).reshape(B, S, D) @ wo

    def _B_ref(x, w1, w2):
        h = torch.einsum("bsd,df->bsf", x, w1)
        h = _silu(h)
        out = torch.einsum("bsf,fd->bsd", h, w2)
        return out

    x = A_x
    g = _sigmoid((x * gate_w).sum(-1, keepdims=True))
    a = _A_ref(x, A_wqkv, A_wo)
    b = _B_ref(x, B_w1, B_w2)
    return g * a + (1 - g) * b
```

```python
import re


class Asm:
    def __init__(self):
        self.lines = []
        self.vmq = []
        self.dsq = []
        self.nlabel = 0

    def __call__(self, s):
        for ln in s.strip("\n").split("\n"):
            self.lines.append("    " + ln.strip())

    def label(self, name):
        self.lines.append(name + ":")

    def comment(self, s):
        self.lines.append("    ; " + s)

    def newlabel(self, base="L"):
        self.nlabel += 1
        return f"{base}_{self.nlabel}"

    def text(self):
        return "\n".join(fix_hazards(self.lines)) + "\n"

    def vm(self, s, tag=None, optional=False):
        self(s)
        self.vmq.append((tag, optional))

    def wait_vm(self, tag):
        idx = None
        for i, (t, _) in enumerate(self.vmq):
            if t == tag:
                idx = i
        if idx is None:
            return
        n = sum(1 for (t, o) in self.vmq[idx + 1:] if not o)
        assert n <= 63
        self(f"s_waitcnt vmcnt({n})")
        self.vmq = self.vmq[idx + 1:]

    def wait_vm_all(self):
        self("s_waitcnt vmcnt(0)")
        self.vmq = []

    def ds(self, s, tag=None):
        self(s)
        self.dsq.append(tag)

    def wait_ds(self, tag):
        idx = None
        for i, t in enumerate(self.dsq):
            if t == tag:
                idx = i
        if idx is None:
            return
        n = len(self.dsq) - 1 - idx
        if n > 15:
            n = 15
            idx = len(self.dsq) - 1 - 15
        self(f"s_waitcnt lgkmcnt({n})")
        self.dsq = self.dsq[idx + 1:]

    def wait_ds_all(self, force=False):
        if self.dsq or force:
            self("s_waitcnt lgkmcnt(0)")
        self.dsq = []

    def state(self):
        return (list(self.vmq), list(self.dsq))

    def set_state(self, st):
        self.vmq, self.dsq = list(st[0]), list(st[1])


def vr(base, n=1):
    return f"v{base}" if n == 1 else f"v[{base}:{base+n-1}]"


def sr(base, n=1):
    return f"s{base}" if n == 1 else f"s[{base}:{base+n-1}]"


class Filler:
    def __init__(self, a):
        self.a = a
        self.q = []
        self.credit = 0.0

    def push(self, cost, text, vmtag=None):
        self.q.append((cost, text, vmtag))

    def total(self):
        return sum(c for c, _, _ in self.q)

    def _emit(self, item):
        cost, text, vmtag = item
        if callable(text):
            text()
        elif vmtag is not None:
            self.a.vm(text, tag=vmtag)
        else:
            self.a(text)

    def give(self, cycles):
        if not self.q:
            self.credit = 0.0
            return
        self.credit += cycles
        while self.q and self.q[0][0] <= self.credit + 1e-9:
            it = self.q.pop(0)
            self.credit -= it[0]
            self._emit(it)

    def flush(self):
        while self.q:
            self._emit(self.q.pop(0))
        self.credit = 0.0


class FillProxy:
    def __init__(self, fl):
        self.fl = fl

    def __call__(self, s):
        self.fl.push(0 if s.startswith("s_") else 4, s)


_REG = re.compile(r"^(-|\|)?([vsa])(\d+)\|?$|^(-|\|)?([vsa])\[(\d+):(\d+)\]\|?$")
TRANS = ("v_exp_", "v_log_", "v_rcp_", "v_rsq_", "v_sqrt_", "v_sin_", "v_cos_")


def _regs(op):
    op = op.strip()
    if op == "vcc":
        return [("s", 106), ("s", 107)]
    if op == "m0":
        return [("m", 0)]
    if op == "exec":
        return [("e", 0)]
    m = _REG.match(op)
    if not m:
        return []
    if m.group(2):
        return [(m.group(2), int(m.group(3)))]
    return [(m.group(5), i) for i in range(int(m.group(6)), int(m.group(7)) + 1)]


def _split_ops(rest):
    rest = re.sub(r"(op_sel|op_sel_hi|neg_lo|neg_hi):\[[0-9,]*\]", "", rest)
    ops = [o.strip() for o in rest.split(",")]
    if ops:
        last = ops[-1].split()
        mods = last[1:]
        ops[-1] = last[0] if last else ""
    else:
        mods = []
    return ops, mods


def _passes(mn):
    if "32x32x16" in mn or "32x32x8" in mn:
        return 8
    if "16x16x32" in mn or "16x16x16" in mn:
        return 4
    raise ValueError(mn)


class HState:
    def __init__(self):
        self.t = 0
        self.d = {}

    def copy_rel(self):
        return {k: (self.t - v[0], v[1]) for k, v in self.d.items() if self.t - v[0] < 32}

    def merge_rel(self, rel):
        for k, (age, info) in rel.items():
            cur = self.d.get(k)
            if cur is None or self.t - cur[0] > age:
                self.d[k] = (self.t - age, info)


def fix_hazards(lines):
    out = []
    st = HState()
    pend = {}
    dead = False
    for ln in lines:
        s = ln.split(";")[0].strip()
        if not s:
            out.append(ln)
            continue
        if s.endswith(":"):
            lab = s[:-1]
            if dead:
                st.d = {}
                dead = False
            for rel in pend.pop(lab, []):
                st.merge_rel(rel)
            out.append(ln)
            continue
        parts = s.split(None, 1)
        mn = parts[0]
        ops, mods = _split_ops(parts[1]) if len(parts) > 1 else ([], [])
        need = 0

        def req(kind, regs, n, pred=None):
            nonlocal need
            for r in regs:
                e = st.d.get((kind, r))
                if e is None:
                    continue
                nn = n(e[1]) if callable(n) else n
                if pred is not None and not pred(e[1]):
                    continue
                dist = st.t - e[0]
                if nn - dist > need:
                    need = nn - dist

        writes = []
        cost = 1
        mf_rw = lambda p: {4: 8, 8: 12}[p[0]]
        if mn == "s_nop":
            cost = int(ops[0], 0) + 1
        elif mn.startswith("v_mfma"):
            p = _passes(mn)
            D, A, B, C = (_regs(o) for o in ops[:4])
            req("valu", A + B + C, 2)
            req("mfma", A + B, mf_rw)
            key = (p, D[0], len(D))
            ckey = (p, C[0], len(C)) if C else None
            req("mfma", C, lambda i: 0 if i == ckey else {4: 6, 8: 10}[i[0]])
            req("mfma", D, lambda i: 0 if i == key else {4: 6, 8: 10}[i[0]])
            req("st", D, 2)
            for r in D:
                writes.append(("mfma", r, key))
            for r in C:
                writes.append(("mfc", r, p))
        elif mn.startswith("v_"):
            dpp = mn.endswith("_dpp") or any(m.startswith(("row_", "quad_perm", "wave_")) for m in mods)
            isT = mn.startswith(TRANS)
            if mn.startswith("v_permlane"):
                dst = _regs(ops[0]) + _regs(ops[1])
                src = dst
                req("valu", src, 2)
            elif mn.startswith("v_cmp"):
                dst = _regs(ops[0])
                src = sum((_regs(o) for o in ops[1:]), [])
            else:
                dst = _regs(ops[0])
                src = sum((_regs(o) for o in ops[1:]), [])
                if mn.startswith(("v_fmac", "v_mac", "v_writelane", "v_dot2c")) or dpp:
                    src = src + dst
                if mn.startswith("v_cndmask") and len(ops) == 3:
                    src = src + _regs("vcc")
            vsrc = [r for r in src if r[0] in "va"]
            ssrc = [r for r in src if r[0] == "s"]
            vdst = [r for r in dst if r[0] in "va"]
            sdst = [r for r in dst if r[0] == "s"]
            req("mfma", vsrc + vdst, mf_rw)
            req("mfc", vdst, lambda p: {4: 3, 8: 7}[p])
            if not isT:
                req("valu", vsrc, 1, pred=lambda i: i == "T")
            if dpp:
                req("valu", vsrc, 2)
            if mn.startswith(("v_readlane", "v_readfirstlane")):
                req("valu", vsrc, 1)
            if mn.startswith(("v_readlane", "v_writelane")):
                req("vsg", _regs(ops[2]), 4)
            req("vsg", ssrc, 2)
            req("st", vdst, 2)
            for r in vdst:
                writes.append(("valu", r, "T" if isT else "N"))
            for r in sdst:
                writes.append(("vsg", r, None))
        elif mn.startswith("ds_"):
            allr = sum((_regs(o) for o in ops), [])
            req("mfma", allr, mf_rw)
            if "read" in mn or "permute" in mn or "swizzle" in mn:
                req("st", _regs(ops[0]), 1)
        elif mn.startswith(("buffer_", "global_")):
            allr = sum((_regs(o) for o in ops), [])
            req("mfma", [r for r in allr if r[0] in "va"], mf_rw)
            req("vsg", [r for r in allr if r[0] == "s"], 5)
            if "lds" in mods:
                req("m0", [("m", 0)], 1)
            elif "load" in mn:
                req("st", _regs(ops[0]), 1)
            if "store" in mn and ("x4" in mn or "x3" in mn):
                for r in _regs(ops[0]):
                    writes.append(("st", r, None))
        elif mn.startswith("s_"):
            if ops and ops[0] == "m0":
                writes.append(("m0", ("m", 0), None))
            req("vsg", sum((_regs(o) for o in ops[1:]), []), 1)
            if mn.startswith("s_cmp") or mn.startswith("s_bitcmp"):
                req("vsg", _regs(ops[0]), 1)
            if ops:
                for r in _regs(ops[0]):
                    st.d.pop(("vsg", r), None)
        while need > 0:
            k = min(need, 16)
            out.append(f"    s_nop {k-1}")
            st.t += k
            need -= k
        out.append(ln)
        st.t += cost
        for kind, r, info in writes:
            st.d[(kind, r)] = (st.t, info)
            if kind == "valu":
                st.d.pop(("mfma", r), None)
            if kind == "mfma":
                st.d.pop(("valu", r), None)
        if mn.startswith("s_cbranch") or mn == "s_branch":
            pend.setdefault(ops[0], []).append(st.copy_rel())
            if mn == "s_branch":
                dead = True
        if mn == "s_endpgm":
            dead = True
    return out
```

```python
from common import *

def body(a):
    mode = opt("bm", "load")
    nw = int(opt("bw", "1"))
    order = [int(c) for c in opt("bo", "01234567")]
    end = a.newlabel("L_be")
    a("s_waitcnt lgkmcnt(0)")
    a(f"s_cmp_ge_u32 {sr(S_W)}, {nw}")
    a(f"s_cbranch_scc1 {end}")
    a(f"s_mul_i32 s60, s2, {nw}")
    a(f"s_add_u32 s60, s60, {sr(S_W)}")
    a(f"s_lshl_b32 s60, s60, {16 if nw == 1 else 14}")
    a("v_lshlrev_b32 v2, 10, v0")
    if nw > 1:
        a("s_mov_b64 exec, 0xffff")
    a("v_mov_b32 v4, 0")
    a("v_mov_b32 v5, 0")
    a("v_mov_b32 v6, 0")
    a("v_mov_b32 v7, 0")
    a(f"buffer_load_dword v3, v2, {sr(SRD_WS,4)}, 0 offen")
    a("s_waitcnt vmcnt(0)")
    a("s_add_u32 s60, s60, 0x400000")
    if mode == "st":
        NS = int(opt("ns", "12"))
        a("s_mov_b64 exec, -1")
        a("v_lshlrev_b32 v2, 4, v0")
        a(f"s_mov_b32 {sr(SRD_WS+2)}, 0x10000000")
        a(f"s_lshl_b32 s61, s2, 3")
        a(f"s_add_u32 s61, s61, {sr(S_W)}")
        a(f"s_mul_i32 s61, s61, {NS*1024}")
        a("s_add_u32 s61, s61, 0x3000000")
        a("s_barrier")
        ts(a, 0)
        k = 1
        for sfx in opt("sv", "sc1/sc0+sc1/nt+sc1/nt+sc0+sc1/wb/sc1/plain").split("/"):
            a("s_mov_b32 s62, s61")
            sf = "" if sfx in ("plain", "wb") else " " + sfx.replace("+", " ")
            for n in range(NS):
                a(f"buffer_store_dwordx4 v[4:7], v2, {sr(SRD_WS,4)}, s62 offen{sf}")
                a("s_add_u32 s62, s62, 1024")
            ts(a, k)
            a("s_waitcnt vmcnt(0)")
            a("s_barrier")
            if sfx == "wb":
                lab = a.newlabel("L_wb")
                a(f"s_cmp_lg_u32 {sr(S_W)}, 0")
                a(f"s_cbranch_scc1 {lab}")
                a("buffer_wbl2 sc1")
                a("s_waitcnt vmcnt(0)")
                a.label(lab)
                a("s_barrier")
            ts(a, k + 1)
            k += 2
            a(f"s_add_u32 s61, s61, {2048*NS*1024}")
        ts_store(a, 0)
        a.label(end)
        return
    if mode == "tcp":
        a("s_mov_b64 exec, -1")
        a(f"s_lshl_b32 s61, {sr(S_W)}, 3")
        a("v_lshrrev_b32 v2, 3, v0")
        a("v_add_u32 v2, s61, v2")
        a("v_and_b32 v3, 7, v0")
        a("v_lshlrev_b32 v3, 4, v3")
        a("v_mul_u32_u24 v4, 9216, v2")
        a("v_mul_u32_u24 v5, 3456, v2")
        a("v_add_u32 v4, v4, v3")
        a("v_add_u32 v5, v5, v3")
        a(f"s_min_u32 s62, {sr(S_M)}, 26")
        a("s_barrier")
        ts(a, 0)
        k = 1
        for rep in range(3):
            for (srd, v, stride, boff, sfx) in ((SRD_W1, 4, 9216, 0, ""), (SRD_WQKV, 5, 3456, 0, ""), (SRD_W1, 4, 9216, 32, " sc1"),
                                               (SRD_W1, 4, 9216, 0, " nt"), (SRD_W1, 4, 9216, 0, " sc0 sc1")):
                a(f"s_lshl_b32 s61, s62, 7")
                a(f"s_add_u32 s61, s61, {boff*128}")
                for n in range(9):
                    a(f"s_add_u32 m0, {sr(S_WL)}, {n*8192}")
                    a(f"buffer_load_dwordx4 v{v}, {sr(srd,4)}, s61 offen{sfx} lds")
                    a(f"s_add_u32 s61, s61, {64*stride}")
                a("s_waitcnt vmcnt(0)")
                a("s_barrier")
                ts(a, k)
                k += 1
        ts_store(a, 0)
        a.label(end)
        return
    if mode == "w1":
        a(f"s_lshl_b32 s61, {sr(S_TB)}, 6")
        a("v_add_u32 v2, s61, v0")
        a("v_mul_u32_u24 v2, 9216, v2")
        a(f"s_mul_i32 s61, {sr(S_M)}, 57")
        a("s_lshr_b32 s61, s61, 9")
        a("s_mul_i32 s61, s61, 9")
        a(f"s_sub_u32 s61, {sr(S_M)}, s61")
        a("s_lshl_b32 s61, s61, 10")
        ts(a, 0)
        for rep in range(2):
            for k, c in enumerate(order[:8 - rep]):
                a(f"buffer_load_dword v3, v2, {sr(SRD_W1,4)}, s61 offen offset:{128*c}")
                a("s_waitcnt vmcnt(0)")
                ts(a, k + 1 + 8 * rep)
        ts_store(a, 0)
        a.label(end)
        return
    ts(a, 0)
    for k, c in enumerate(order):
        if mode == "load":
            a(f"buffer_load_dword v3, v2, {sr(SRD_WS,4)}, s60 offen offset:{128*c} sc1")
        else:
            a(f"buffer_store_dwordx4 v[4:7], v2, {sr(SRD_WS,4)}, s60 offen offset:{128*c} sc1")
        a("s_waitcnt vmcnt(0)")
        ts(a, k + 1)
    for k, c in enumerate(order[:7]):
        a(f"buffer_load_dword v3, v2, {sr(SRD_WS,4)}, s60 offen offset:{128*c} sc1")
        a("s_waitcnt vmcnt(0)")
        ts(a, k + 9)
    a("s_mov_b64 exec, -1")
    ts_store(a, 0)
    a.label(end)
```

```python
import sys, os, struct, math
from asmlib2 import Asm, Filler, vr, sr

NAME = "gated_mix__sliding_block__dense_activation_silu__prompt"

QKVT_OFF = 0
QKVT_HALF = 1728 * 32
QKVT_BLK = 2 * QKVT_HALF
A2_OFF = 0x700000
A2_TILE = 324 * 1024
G_OFF = 0x1C00000
FLAG_OFF = 0x1C10000
P_OFF = 0x1D00000
TS_OFF = 0x2800000
WS_SIZE = 0x2900000
LDS_BYTES = 163840

SRD_X, SRD_WQKV, SRD_W1, SRD_WS, SRD_W2, SRD_WO, SRD_OUT, SRD_GATE, SRD_DBG = 8, 12, 16, 20, 24, 28, 32, 36, 40
S_TB, S_M, S_W, S_XC, S_J = 44, 45, 46, 47, 48
S_WL = 49
S_NONCE = 50
S_NL2E = 51
S_T0 = 52
S_A = 60
S_TS = 92
V_TSR = 255


def f32bits(x):
    return struct.unpack("<I", struct.pack("<f", x))[0]


LOG2E = math.log2(math.e)
QSCALE = LOG2E / math.sqrt(18.0)


class Cfg:
    fused = False
    ts = False
    D = 3
    R = 5
    dbg = set()
    tsnames = []


cfg = Cfg()


def pol(name, default=""):
    for k in cfg.dbg:
        if k.startswith(name + "="):
            v = k[len(name) + 1:].replace("+", " ")
            return (" " + v) if v else ""
    return (" " + default) if default else ""


def opt(name, default):
    for k in cfg.dbg:
        if k.startswith(name + "="):
            return k[len(name) + 1:]
    return default


def ts(a, k):
    if not cfg.ts:
        return
    if isinstance(k, str):
        if k not in cfg.tsnames:
            return
        k = cfg.tsnames.index(k)
    a.wait_ds_all()
    if k == 0:
        a(f"s_memrealtime {sr(S_TS+4,2)}")
        a(f"s_memtime {sr(S_TS+6,2)}")
        a("s_waitcnt lgkmcnt(0)")
        return
    a(f"s_memrealtime {sr(S_TS,2)}")
    a(f"s_memtime {sr(S_TS+2,2)}")
    a("s_waitcnt lgkmcnt(0)")
    a(f"v_writelane_b32 {vr(V_TSR)}, {sr(S_TS)}, {k}")
    a(f"v_writelane_b32 {vr(V_TSR)}, {sr(S_TS+2)}, {16+k}")


def ts_store(a, slot):
    if not cfg.ts:
        return
    lab = a.newlabel("L_ts")
    a(f"s_cmp_lg_u32 {sr(S_W)}, 0")
    a(f"s_cbranch_scc1 {lab}")
    a(f"v_writelane_b32 {vr(V_TSR)}, {sr(S_TS+4)}, 0")
    a(f"v_writelane_b32 {vr(V_TSR)}, {sr(S_TS+6)}, 16")
    if "entry" in cfg.tsnames:
        a(f"v_writelane_b32 {vr(V_TSR)}, s100, {cfg.tsnames.index('entry')}")
    a("s_mov_b64 exec, 0xffffffff")
    a(f"s_lshl_b32 {sr(S_T0)}, s2, 9")
    a(f"s_add_u32 {sr(S_T0)}, {sr(S_T0)}, {TS_OFF + slot*128}")
    a("v_lshlrev_b32 v1, 2, v0")
    a(f"buffer_store_dword {vr(V_TSR)}, v1, {sr(SRD_WS,4)}, {sr(S_T0)} offen")
    a("s_mov_b64 exec, -1")
    a.label(lab)


def prologue(a, endlabel):
    if cfg.ts and "entry" in cfg.tsnames:
        a("s_memrealtime s[100:101]")
    a("s_cmp_ge_u32 s2, 256")
    a(f"s_cbranch_scc1 {endlabel}")
    for srd, off in ((SRD_X, 0), (SRD_WQKV, 8), (SRD_W1, 32), (SRD_WS, 72), (SRD_WO, 16), (SRD_W2, 40), (SRD_GATE, 48),
                     (SRD_OUT, 56), (SRD_DBG, 64)):
        a(f"s_load_dwordx2 {sr(srd,2)}, s[0:1], {off}")
    sizes = {SRD_X: 2048 * 1152, SRD_WQKV: 576 * 3456, SRD_WO: 576 * 1152, SRD_W1: 576 * 9216, SRD_W2: 4608 * 1152,
             SRD_GATE: 1152, SRD_OUT: 2048 * 1152, SRD_DBG: 256, SRD_WS: WS_SIZE}
    for srd, sz in sizes.items():
        a(f"s_mov_b32 {sr(srd+2)}, {sz}")
        a(f"s_mov_b32 {sr(srd+3)}, 0x00020000")
    a("v_lshrrev_b32 v1, 6, v0")
    a("v_and_b32 v0, 63, v0")
    a(f"s_and_b32 {sr(S_XC)}, s2, 7")
    a(f"v_readfirstlane_b32 {sr(S_W)}, v1")
    a(f"s_lshr_b32 s3, s2, 3")
    a(f"s_and_b32 {sr(S_J)}, s3, 3")
    a(f"s_lshr_b32 {sr(S_TB)}, s3, 2")
    a(f"s_lshl_b32 {sr(S_M)}, {sr(S_XC)}, 2")
    a(f"s_add_u32 {sr(S_M)}, {sr(S_M)}, {sr(S_J)}")
    a(f"s_mov_b32 {sr(S_NL2E)}, 0x{f32bits(-LOG2E):08x}")
    a(f"s_lshl_b32 {sr(S_WL)}, {sr(S_W)}, 10")


class LdsAddr:
    def __init__(self, a, regs, base=0):
        self.a = a
        self.regs = regs
        self.base = base

    def move(self, nb):
        d = nb - self.base
        if d == 0:
            return
        for r in self.regs:
            if d > 0:
                self.a(f"v_add_u32 {vr(r)}, {d}, {vr(r)}")
            else:
                self.a(f"v_subrev_u32 {vr(r)}, {-d}, {vr(r)}")
        self.base = nb

    def off(self, byte, span=0):
        if not (0 <= byte - self.base and byte + span - self.base <= 65535):
            self.move((byte // 8192) * 8192)
        return byte - self.base


def frag_pipeline(a, frags, ring_base, R, D, rsz=4):
    n = len(frags)
    uid = a.newlabel("f")
    for i in range(n + D):
        if i < n:
            f = frags[i]
            if f.get("pre"):
                f["pre"]()
            f["reads"](ring_base + (i % R) * rsz, f"{uid}_{i}")
            if f.get("side"):
                f["side"]()
        j = i - D
        if j >= 0:
            f = frags[j]
            if f.get("premf"):
                f["premf"]()
            a.wait_ds(f"{uid}_{j}")
            for t in f["mfmas"](ring_base + (j % R) * rsz):
                a(t)
                if f.get("fill"):
                    f["fill"][0].give(f["fill"][1])
            if f.get("post"):
                f["post"]()
```

```python
from common import *
from asmlib2 import FillProxy
import phase1 as p1, phase2 as p2, phase3 as p3, sync

S_FQ, S_PB, S_PF, S_PF2, S_PFD = 3, 4, 6, 7, 5
V_NON = 254


def iopt(name, default):
    for k in cfg.dbg:
        if k.startswith(name + "="):
            return int(k[len(name) + 1:])
    return default


def body(a):
    T0, T1, T2 = S_T0, S_T0 + 1, S_T0 + 2
    I_FLAG = iopt("iflag", 24)
    I_POLL = iopt("ipoll", 44)
    PF = opt("pf", "b2+b12+b22+b32+b42").split("+")

    def pf_at(pos):
        for k, p in enumerate(PF):
            if p == pos:
                if pos[0] == "a" or (pos[0] == "b" and int(pos[1:]) < I_POLL - 8):
                    touch(k, 3, "v2")
                else:
                    touch(k, p1.V_DW1 if pos[0] == 'b' else p1.V_DE)
    J_H = iopt("jh", 6)
    CP = [int(c) for c in opt("cp", "60").split("+")]
    I_POLL = CP[0]
    S_DONE = 5
    AKS, AKN = iopt("aks", 2), iopt("akn", 1)
    ST_CLR = iopt("stclr", -12)
    a.nonce_req = False
    POFF, PDAT = p2.V_POFF, p2.V_PDAT

    def touch(k, vd, va="v1"):
        a(f"v_lshlrev_b32 {va}, 7, v0")
        if k < 4:
            a("s_mov_b64 exec, 0x3ff")
            a.vm(f"buffer_load_dword {vr(vd)}, {va}, {sr(SRD_W2,4)}, {sr(S_PF)} offen", "pf")
            a(f"s_add_u32 {sr(S_PF)}, {sr(S_PF)}, {sr(S_PFD) if k == 1 else 2560*128}")
        else:
            lab, l2 = a.newlabel("L_t"), a.newlabel("L_t")
            a("s_mov_b64 exec, 0xff")
            a(f"v_add_u32 {va}, {sr(S_PF2)}, {va}")
            a(f"s_cmp_lt_u32 {sr(S_XC)}, 2")
            a(f"s_cbranch_scc1 {lab}")
            a(f"buffer_load_dword {vr(vd)}, {va}, {sr(SRD_WO,4)}, 0 offen")
            a(f"s_branch {l2}")
            a.label(lab)
            a.vm(f"buffer_load_dword {vr(vd)}, {va}, {sr(SRD_W2,4)}, 0 offen", "pf")
            a.label(l2)
        a("s_mov_b64 exec, -1")

    def early():
        a.nonce_req = False
        sync.nonce_publish(a)
        a(f"s_lshl_b32 {sr(T0)}, {sr(S_TB)}, 3")
        a(f"s_add_u32 {sr(T0)}, {sr(T0)}, {sr(S_W)}")
        a(f"s_lshl_b32 {sr(S_FQ)}, {sr(T0)}, 7")
        a(f"s_lshl_b32 {sr(T0)}, {sr(S_M)}, 2")
        a(f"s_add_u32 {sr(S_FQ)}, {sr(S_FQ)}, {sr(T0)}")
        a(f"s_add_u32 {sr(S_FQ)}, {sr(S_FQ)}, {sync.FL_QKV}")
        a(f"s_mov_b32 {sr(S_PB)}, {sync.FL_QKV}")
        a(f"s_lshr_b32 {sr(T1)}, {sr(S_XC)}, 1")
        a(f"s_mul_i32 {sr(S_PF)}, {sr(T1)}, {9792*128}")
        a(f"s_lshr_b32 {sr(T0)}, s2, 3")
        a(f"s_lshl_b32 {sr(T0)}, {sr(T0)}, 3")
        a(f"s_add_u32 {sr(T0)}, {sr(T0)}, {sr(S_W)}")
        a(f"s_mul_i32 {sr(S_PF2)}, {sr(T1)}, {1944*128}")
        a(f"s_sub_u32 {sr(S_PF2)}, {sr(S_PF2)}, {1944*128}")
        a(f"s_cmp_eq_u32 {sr(T1)}, 0")
        a(f"s_cselect_b32 {sr(S_PF2)}, {4416*1152}, {sr(S_PF2)}")
        a(f"s_lshl_b32 {sr(T1)}, {sr(T0)}, 10")
        a(f"s_add_u32 {sr(S_PF2)}, {sr(S_PF2)}, {sr(T1)}")
        a(f"s_mul_i32 {sr(T0)}, {sr(T0)}, {10*128}")
        a(f"s_add_u32 {sr(S_PF)}, {sr(S_PF)}, {sr(T0)}")
        a(f"s_and_b32 {sr(T0)}, {sr(S_XC)}, {0 if 'noswap' in cfg.dbg else 1}")
        a(f"s_mul_i32 {sr(T0)}, {sr(T0)}, {2*2560*128}")
        a(f"s_add_u32 {sr(S_PF)}, {sr(S_PF)}, {sr(T0)}")
        a(f"s_lshl_b32 {sr(T0)}, {sr(T0)}, 1")
        a(f"s_sub_u32 {sr(S_PFD)}, {2560*128}, {sr(T0)}")

    def a_side(n, i):
        if n == 1 and i == 0:
            sync.nonce_request(a, V_NON)
        pf_at(f"a{n}.{i}")

    dl = p2.dma_list()

    def checkpoint(last):
        skip, retry = a.newlabel("L_cs"), a.newlabel("L_cr")
        a(f"s_cmp_lg_u32 {sr(S_DONE)}, 0")
        a(f"s_cbranch_scc1 {skip}")
        st = a.state()
        if last:
            sync.poll_finish(a, POFF, S_PB, PDAT, "pq")
        else:
            a.wait_vm("pq")
            a(f"v_cmp_ne_u32 vcc, {sr(S_NONCE)}, {vr(PDAT)}")
            a("s_nop 4")
            a(f"s_cbranch_vccnz {retry}")
        ts(a, "pq")
        p2.g_load(a)
        p2.dma_issue(a, dl)
        if not last:
            a(f"s_mov_b32 {sr(S_DONE)}, 1")
            a(f"s_branch {skip}")
            a.label(retry)
            sync.poll_request(a, POFF, S_PB, PDAT, "pq")
        a.label(skip)
        a.set_state(st)
        a.vmq.append(("akv" if last else "pq", True))

    def b_side(i, variant, marks):
        ts(a, f"B{i}")
        if i == 37:
            assert marks.get("setup") and marks.get("free")
            p2.pad_write(a)
        if i == (I_FLAG if variant == "Q" else 70):
            assert marks.get("g01") and marks.get("setup")
            a.wait_vm("st0")
            ts(a, "st0")
            sync.flag_store(a, S_FQ, V_NON)
        if i == CP[0] - 8:
            sync.poll_request(a, POFF, S_PB, PDAT, "pq")
        if len(CP) > 1:
            if i in CP:
                checkpoint(i == CP[-1])
        else:
            if i == I_POLL:
                sync.poll_finish(a, POFF, S_PB, PDAT, "pq")
                ts(a, "pq")
                p2.g_load(a)
            if i >= I_POLL and (i - I_POLL) % AKS == 0:
                k = (i - I_POLL) // AKS
                p2.dma_issue(a, dl[AKN * k:AKN * k + AKN])
        pf_at(f"b{i}")

    def flag(base, tag):
        a.wait_vm(tag)
        a(f"s_add_u32 {sr(T0)}, {sr(S_FQ)}, {base - sync.FL_QKV}")
        sync.flag_store(a, T0, V_NON)

    p1.phase1(a, dict(early=early, a_side=a_side, b_side=b_side, gcheck=lambda: p2.g_check(a),
                      setup=lambda fl: p2.dma_setup(FillProxy(fl)),
                      b_end=lambda variant: flag(sync.FL_H, "st1"),
                      hflag=lambda: flag(sync.FL_H2, "st2")))

    p2.setup_regs(a)
    p3.setup_dma(a)
    ts(a, "T0")
    a.wait_vm("akv")
    p2.g_check(a)
    a(f"v_lshlrev_b32 {vr(p2.V_G)}, 16, v2")
    a("s_barrier")
    ts(a, "X")
    wq = [("m", 0)] + [(st, i) for st in range(5) for i in range(3)]

    def wpump():
        if wq:
            st, i = wq.pop(0)
            if st == "m":
                p3.mini_dma(a)
            else:
                p3.w_dma(a, st, i)

    def qk(t):
        wpump()
        pf_at(f"q{t}")

    def mid():
        ts(a, "Tmid")
        p3.setup_rest(a)
        a(f"s_sub_u32 {sr(S_PB)}, {sr(p3.S_GO)}, {G_OFF}")
        a(f"s_lshr_b32 {sr(S_PB)}, {sr(S_PB)}, 1")
        a(f"s_add_u32 {sr(S_PB)}, {sr(S_PB)}, {sync.FL_QKV}")
        a(f"s_lshl_b32 {sr(T0)}, {sr(p3.S_S)}, 3")
        a(f"s_add_u32 {sr(T0)}, {sr(T0)}, {(sync.FL_H - sync.FL_QKV)//4}")
        a(f"s_add_u32 {sr(T1)}, {sr(p3.S_S)}, 27")
        a(f"v_mov_b32 v1, {sr(T1)}")
        a("v_cmp_eq_u32 vcc, 8, v0")
        a("v_cndmask_b32 v1, 31, v1, vcc")
        a(f"v_add_u32 {vr(POFF)}, {sr(T0)}, v0")
        a("v_cmp_gt_u32 vcc, 8, v0")
        a(f"v_cndmask_b32 {vr(POFF)}, v1, {vr(POFF)}, vcc")
        a(f"v_lshlrev_b32 {vr(POFF)}, 2, {vr(POFF)}")

    hq = [("m", 0)] + [(st, i) for st in range(p3.HD) for i in range(2)]

    def pv(j):
        wpump()
        pf_at(f"p{j}")
        if j == 3:
            flag(sync.FL_H2, "st2")
            ts(a, "h2f")
        if j == J_H - 5:
            sync.poll_request(a, POFF, S_PB, PDAT, "ph")
        if j == J_H:
            sync.poll_finish(a, POFF, S_PB, PDAT, "ph")
            ts(a, "ph")
        if ST_CLR < 0 and j in (-ST_CLR, 1 - ST_CLR):
            assert not hq
            p3.clears(a, j + ST_CLR, p2.KR)
        if j >= J_H:
            for _ in range(2):
                if hq:
                    st, i = hq.pop(0)
                    if st == "m":
                        p3.h_mini(a)
                    else:
                        p3.h_load(a, st, i)

    p2.compute(a, dict(qk=qk, mid=mid, pv=pv))
    assert not wq and not hq
    ts(a, "Tend")
    a(f"s_lshl_b32 {sr(T0)}, {sr(p3.S_S)}, 3")
    a(f"s_add_u32 {sr(T0)}, {sr(T0)}, {(sync.FL_H2 - sync.FL_QKV)//4}")
    a(f"v_and_b32 {vr(POFF)}, 7, v0")
    a(f"v_add_lshl_u32 {vr(POFF)}, {vr(POFF)}, {sr(T0)}, 2")
    a.wait_vm("W1")
    a("s_barrier")
    ts(a, "G0")
    HD = p3.HD

    def bar(st):
        if st == 2:
            flag(sync.FL_O, "ost")

    def post(st, i, nt):
        if i == 0:
            pf_at(f"g{st}")
        if (st, i) == (p3.H2ST - HD - 2, 1):
            sync.poll_request(a, POFF, S_PB, PDAT, "p2")
        if (st, i) == (p3.H2ST - HD, 0):
            sync.poll_finish(a, POFF, S_PB, PDAT, "p2")
            ts(a, "p2")
            a(f"v_and_b32 {vr(POFF)}, 31, v0")
            a(f"v_lshlrev_b32 {vr(POFF)}, 2, {vr(POFF)}")
            a(f"v_add_u32 {vr(POFF)}, {sync.FL_O - sync.FL_QKV}, {vr(POFF)}")
        if (st, i) == (p3.LATE - HD - 3, 1):
            sync.poll_request(a, POFF, S_PB, PDAT, "po")
        if (st, i) == (p3.LATE - HD, 0):
            sync.poll_finish(a, POFF, S_PB, PDAT, "po")
            ts(a, "po")
            p3.omg_load(a)
            a(f"v_and_b32 {vr(POFF)}, 3, v0")
            a(f"v_lshlrev_b32 {vr(POFF)}, 2, {vr(POFF)}")
        if st == ST_CLR:
            p3.clears(a, i)
        if (st, i) == (max(ST_CLR, 0) + 7, 0):
            a.wait_vm("clr")
            a(f"s_lshl_b32 {sr(T0)}, {sr(p3.S_S)}, 2")
            a(f"s_add_u32 {sr(T0)}, {sr(T0)}, {sr(p3.S_FB)}")
            sync.flag_store(a, T0, V_NON)
        if (st, i) == (17, 1):
            sync.poll_request(a, POFF, p3.S_FB, PDAT, "pc")

    def presend():
        sync.poll_finish(a, POFF, p3.S_FB, PDAT, "pc")

    p3.main(a, 5, dict(bar=bar, post=post, presend=presend))
    ts_store(a, 0)
```

```python
from common import *
import sync

X_BASE = 16
ACC0, ACC1, RING, TMP = 160, 192, 224, 244
V_XD0, V_XD1, V_DW1, V_DWQ, V_TR0, V_TR1, V_XR, V_L16, V_QST, V_TRE, V_DE = 2, 3, 4, 5, 6, 7, 8, 12, 13, 14, 15
V_GO, V_GS, V_NON = 252, 253, 254
V_G2 = 2
SLOT = 8192
E_BASE = 53248
(S_G0, S_G1, S_G2, S_GE, S_X16, S_H0, S_H1, S_H2, S_HE, S_QS, S_QS1, S_GT, S_GX, S_ME) = range(S_A, S_A + 14)
U2SLOT = [3, 8, 5, 2, 9]
MF = "v_mfma_f32_32x32x16_bf16"


def xreg(ks):
    return X_BASE + 4 * ks


def wslot(n, grp):
    return 2 * (n % 4) + grp


def xslot(n, i):
    return 8 + 3 * i + (n % 3)


def bslot(j):
    return 11 + 3 * (j % 3) + j // 3


def silu_chunk(fl, base, store_text, tag, scale=None):
    t = TMP
    for r in range(8):
        fl.push(4, f"v_mul_f32 {vr(t+r)}, {sr(S_NL2E)}, {vr(base+r)}")
    for r in range(8):
        fl.push(16, f"v_exp_f32 {vr(t+r)}, {vr(t+r)}")
    if scale is not None:
        for r in range(8):
            fl.push(4, f"v_mul_f32 {vr(base+r)}, {vr(base+r)}, {vr(scale)}")
    for r in range(8):
        fl.push(4, f"v_add_f32 {vr(t+r)}, 1.0, {vr(t+r)}")
    for r in range(8):
        fl.push(16, f"v_rcp_f32 {vr(t+r)}, {vr(t+r)}")
    for r in range(8):
        fl.push(4, f"v_mul_f32 {vr(base+r)}, {vr(base+r)}, {vr(t+r)}")
    for r in range(4):
        fl.push(4, f"v_cvt_pk_bf16_f32 {vr(base+r)}, {vr(base+2*r)}, {vr(base+2*r+1)}")
    fl.push(4, store_text, vmtag=tag)


def ffn_tile(fl, acc, s_h, kboff, tag, scale=None):
    for c in range(2):
        b = acc + 8 * c
        silu_chunk(fl, b, f"buffer_store_dwordx4 {vr(b,4)}, {vr(V_L16)}, {sr(SRD_WS,4)}, {sr(s_h)} offen offset:{(kboff+c)*1024} sc1", tag, scale)


def gate_items(a, fl):
    XG, WG = xreg(32), xreg(34)
    t = TMP
    fl.push(0, lambda: a.wait_vm("gate"))
    fl.push(4, f"v_mov_b32 {vr(t)}, 0")
    fl.push(4, f"v_mov_b32 {vr(t+1)}, 0")
    for r in range(8):
        xr, wr = XG + r, WG + r
        for s in (f"v_lshlrev_b32 {vr(t+2)}, 16, {vr(xr)}",
                  f"v_and_b32 {vr(t+3)}, 0xffff0000, {vr(xr)}",
                  f"v_lshlrev_b32 {vr(t+4)}, 16, {vr(wr)}",
                  f"v_and_b32 {vr(t+5)}, 0xffff0000, {vr(wr)}",
                  f"v_mul_f32 {vr(t+2)}, {vr(t+2)}, {vr(t+4)}",
                  f"v_mul_f32 {vr(t+3)}, {vr(t+3)}, {vr(t+5)}",
                  f"v_cvt_pk_bf16_f32 {vr(t+2)}, {vr(t+2)}, {vr(t+3)}",
                  f"v_lshlrev_b32 {vr(t+3)}, 16, {vr(t+2)}",
                  f"v_and_b32 {vr(t+2)}, 0xffff0000, {vr(t+2)}",
                  f"v_add_f32 {vr(t)}, {vr(t)}, {vr(t+3)}",
                  f"v_add_f32 {vr(t+1)}, {vr(t+1)}, {vr(t+2)}"):
            fl.push(4, s)
    fl.push(12, f"v_add_f32 {vr(t)}, {vr(t)}, {vr(t+1)}")
    for sh in (1, 2, 4, 8):
        fl.push(12, f"v_add_f32_dpp {vr(t)}, {vr(t)}, {vr(t)} row_shr:{sh} row_mask:0xf bank_mask:0xf bound_ctrl:0")
    fl.push(12, f"v_add_f32_dpp {vr(t)}, {vr(t)}, {vr(t)} row_bcast:15 row_mask:0xa bank_mask:0xf")
    fl.push(4, f"v_add_f32_dpp {vr(t)}, {vr(t)}, {vr(t)} row_bcast:31 row_mask:0xc bank_mask:0xf")
    for c, s in ((4, f"v_cvt_pk_bf16_f32 {vr(t)}, {vr(t)}, {vr(t)}"),
                 (4, f"v_and_b32 {vr(t)}, 0xffff0000, {vr(t)}"),
                 (4, f"v_mul_f32 {vr(t)}, {sr(S_NL2E)}, {vr(t)}"),
                 (12, f"v_exp_f32 {vr(t)}, {vr(t)}"),
                 (4, f"v_add_f32 {vr(t)}, 1.0, {vr(t)}"),
                 (12, f"v_rcp_f32 {vr(t)}, {vr(t)}"),
                 (4, f"v_cvt_pk_bf16_f32 {vr(t)}, {vr(t)}, {vr(t)}"),
                 (4, f"v_and_b32 {vr(t)}, 0xffff0000, {vr(t)}"),
                 (4, f"v_sub_f32 {vr(t+1)}, 1.0, {vr(t)}"),
                 (4, f"v_cvt_pk_bf16_f32 {vr(t)}, {vr(t)}, {vr(t+1)}")):
        fl.push(c, s)
    fl.push(4, lambda: sync.nonce_get(a, V_NON))
    fl.push(4, f"v_mov_b32 {vr(t+1)}, {sr(S_NONCE)}")
    fl.push(4, f"buffer_store_dwordx2 {vr(t,2)}, {vr(V_GS)}, {sr(SRD_WS,4)}, {sr(S_GT)} offen sc1", vmtag="gst")


def phase1(a, hooks=None):
    hooks = hooks or {}
    T0, T1, T2, T3 = S_T0, S_T0 + 1, S_T0 + 2, S_T0 + 3
    a("v_lshrrev_b32 v1, 3, v0")
    a(f"s_lshl_b32 {sr(T0)}, {sr(S_TB)}, 8")
    a(f"s_lshl_b32 {sr(T1)}, {sr(S_W)}, 5")
    a(f"s_add_u32 {sr(T0)}, {sr(T0)}, {sr(T1)}")
    a(f"v_add_u32 {vr(V_XD1)}, {sr(T0)}, v1")
    a(f"v_mul_u32_u24 {vr(V_XD1)}, 1152, {vr(V_XD1)}")
    a(f"v_lshrrev_b32 {vr(V_DE)}, 4, v0")
    a(f"v_xor_b32 {vr(V_DE)}, {vr(V_DE)}, v0")
    a(f"v_and_b32 {vr(V_DE)}, 7, {vr(V_DE)}")
    a(f"v_lshl_add_u32 {vr(V_XD0)}, {vr(V_DE)}, 4, {vr(V_XD1)}")
    a(f"v_xor_b32 {vr(V_XD1)}, 64, {vr(V_XD0)}")
    a(f"v_add_u32 {vr(V_XD1)}, {8*1152}, {vr(V_XD1)}")
    a(f"s_mov_b32 {sr(S_X16)}, {16*1152}")
    a(f"s_lshl_b32 {sr(T1)}, {sr(S_W)}, 3")
    a(f"v_add_u32 v1, {sr(T1)}, v1")
    a(f"v_lshrrev_b32 {vr(V_DE)}, 2, v0")
    a(f"v_and_b32 {vr(V_DE)}, 4, {vr(V_DE)}")
    a(f"v_xor_b32 {vr(V_DE)}, {vr(V_DE)}, v0")
    a(f"v_and_b32 {vr(V_DE)}, 7, {vr(V_DE)}")
    a(f"v_lshlrev_b32 {vr(V_DE)}, 4, {vr(V_DE)}")
    a(f"v_mul_u32_u24 {vr(V_DW1)}, 9216, v1")
    a(f"v_mul_u32_u24 {vr(V_DWQ)}, 3456, v1")
    a(f"v_add_u32 {vr(V_DW1)}, {vr(V_DW1)}, {vr(V_DE)}")
    a(f"v_add_u32 {vr(V_DWQ)}, {vr(V_DWQ)}, {vr(V_DE)}")
    a("v_lshrrev_b32 v1, 2, v0")
    a("v_mul_u32_u24 v1, 9216, v1")
    a(f"v_and_b32 {vr(V_DE)}, 3, v0")
    a(f"v_lshl_add_u32 {vr(V_DE)}, {vr(V_DE)}, 4, v1")
    a(f"s_lshr_b32 {sr(T1)}, {sr(S_M)}, 3")
    a(f"s_mul_i32 {sr(T1)}, {sr(T1)}, 9")
    a(f"s_add_u32 {sr(T1)}, {sr(T1)}, {sr(S_M)}")
    a(f"s_mul_i32 {sr(T2)}, {sr(S_M)}, 17")
    a(f"s_sub_u32 {sr(T2)}, {sr(T2)}, {17*27-8}")
    a(f"s_min_u32 {sr(T2)}, {sr(T2)}, 68")
    a(f"s_cmp_lt_u32 {sr(S_M)}, 27")
    a(f"s_cselect_b32 {sr(T2)}, {sr(S_M)}, {sr(T2)}")
    a(f"s_lshl_b32 {sr(S_G0)}, {sr(T2)}, 7")
    a(f"s_lshl_b32 {sr(S_H0)}, {sr(T2)}, 12")
    a(f"s_lshl_b32 {sr(S_G1)}, {sr(T1)}, 7")
    a(f"s_and_b32 {sr(T2)}, {sr(S_M)}, 7")
    a(f"s_cmp_lt_u32 {sr(T2)}, 5")
    a(f"s_cselect_b32 {sr(S_H2)}, 12, 4")
    a(f"s_lshl_b32 {sr(S_G2)}, {sr(S_H2)}, 7")
    a(f"s_add_u32 {sr(S_G2)}, {sr(S_G2)}, {sr(S_G1)}")
    a(f"s_mul_i32 {sr(S_GE)}, {sr(S_W)}, {16*9216}")
    a(f"s_lshl_b32 {sr(S_ME)}, {sr(S_XC)}, 1")
    a(f"s_add_u32 {sr(S_ME)}, {sr(S_ME)}, {sr(S_J)}")
    a(f"s_bitcmp1_b32 {sr(S_XC)}, 0")
    a(f"s_cselect_b32 {sr(S_ME)}, 16, {sr(S_ME)}")
    a("s_waitcnt lgkmcnt(0)")
    ts(a, 0)

    typeF = a.newlabel("L_typeF")
    passB = a.newlabel("L_passB")
    a(f"s_cmp_ge_u32 {sr(S_M)}, 27")
    a(f"s_cbranch_scc1 {typeF}")

    def x_dma(n, i):
        a(f"s_add_u32 m0, {sr(S_WL)}, {xslot(n,i)*SLOT - 128*n}")
        so = "0" if i < 2 else sr(S_X16)
        a.vm(f"buffer_load_dwordx4 {vr(V_XD1 if i & 1 else V_XD0)}, {sr(SRD_X,4)}, {so} offen offset:{128*n}{pol('x')} lds", f"x{n}")

    def x_read(n, kk):
        a.ds(f"ds_read_b128 {vr(xreg(4*n+kk),4)}, {vr(V_XR+kk)} offset:{(n%3)*SLOT}", f"xr{n}")

    def b_dma(j):
        a(f"s_add_u32 m0, {sr(S_WL)}, {bslot(j)*SLOT}")
        a.vm(f"buffer_load_dwordx4 {vr(V_DW1)}, {sr(SRD_W1,4)}, {sr(S_G2)} offen{pol('w1')} lds", f"B{j}")
        if j < 8:
            a(f"s_add_u32 {sr(S_G2)}, {sr(S_G2)}, {64*9216}")

    saved = a.state()
    tails = []
    for variant in ("Q", "F"):
        a.set_state(saved)
        if variant == "F":
            a.label(typeF)
        g0_srd, g0_voff, g0_stride = (SRD_WQKV, V_DWQ, 3456) if variant == "Q" else (SRD_W1, V_DW1, 9216)

        def w_dma(n, grp=None):
            if grp is None:
                w_dma(n, 0)
                w_dma(n, 1)
                return
            a(f"s_add_u32 m0, {sr(S_WL)}, {wslot(n,grp)*SLOT}")
            if grp == 0:
                a.vm(f"buffer_load_dwordx4 {vr(g0_voff)}, {sr(g0_srd,4)}, {sr(S_G0)} offen{pol('w1')} lds", f"W{n}")
                if n < 8:
                    a(f"s_add_u32 {sr(S_G0)}, {sr(S_G0)}, {64*g0_stride}")
            else:
                a.vm(f"buffer_load_dwordx4 {vr(V_DW1)}, {sr(SRD_W1,4)}, {sr(S_G1)} offen{pol('w1')} lds", f"W{n}")
                if n < 8:
                    a(f"s_add_u32 {sr(S_G1)}, {sr(S_G1)}, {64*9216}")

        w_dma(0)
        for i in range(4):
            x_dma(0, i)
        t = TMP
        a("v_and_b32 v1, 31, v0")
        a(f"v_lshrrev_b32 {vr(t)}, 3, v1")
        a(f"v_mul_u32_u24 {vr(t)}, {3*SLOT}, {vr(t)}")
        a(f"v_and_b32 {vr(V_TRE)}, 7, v0")
        a(f"v_lshl_add_u32 {vr(t)}, {vr(V_TRE)}, 7, {vr(t)}")
        a(f"s_add_u32 {sr(T2)}, {sr(S_WL)}, {8*SLOT}")
        a(f"v_add_u32 {vr(t)}, {sr(T2)}, {vr(t)}")
        a(f"v_bfe_u32 {vr(V_TRE)}, v0, 1, 3")
        a(f"v_lshrrev_b32 v1, 5, v0")
        a(f"v_xor_b32 v1, v1, {vr(V_TRE)}")
        for kk in range(4):
            a(f"v_xor_b32 {vr(V_XR+kk)}, {2*kk}, v1")
            a(f"v_lshl_add_u32 {vr(V_XR+kk)}, {vr(V_XR+kk)}, 4, {vr(t)}")
        SB = int(opt("sb", "0"))
        if SB >= 1:
            a("s_barrier")
        for i in range(4):
            x_dma(1, i)
        w_dma(1)
        a("v_bfe_u32 v1, v0, 2, 2")
        a(f"v_lshrrev_b32 {vr(t)}, 5, v0")
        a(f"v_lshl_add_u32 v1, {vr(t)}, 3, v1")
        a(f"v_and_b32 {vr(t)}, 3, v0")
        a(f"v_lshlrev_b32 {vr(t)}, 3, {vr(t)}")
        a(f"v_bfe_u32 {vr(V_TRE)}, v0, 4, 1")
        a(f"v_lshl_add_u32 {vr(t)}, {vr(V_TRE)}, 5, {vr(t)}")
        a(f"v_lshl_add_u32 {vr(V_TRE)}, v1, 6, {vr(t)}")
        a(f"v_add_u32 {vr(V_TRE)}, {E_BASE}, {vr(V_TRE)}")
        a(f"v_lshl_add_u32 {vr(V_TR0)}, v1, 7, {vr(t)}")
        a(f"v_bfe_u32 v1, v0, 3, 1")
        a(f"v_lshl_add_u32 {vr(V_TR0)}, v1, 6, {vr(V_TR0)}")
        a(f"v_xor_b32 {vr(V_TR1)}, 64, {vr(V_TR0)}")
        if SB >= 2:
            a("s_barrier")
        for i in range(4):
            x_dma(2, i)
        w_dma(2)
        a(f"s_add_u32 {sr(T2)}, {sr(T0)}, {sr(S_M)}")
        a(f"s_mul_i32 {sr(S_GX)}, {sr(T2)}, 1152")
        a(f"s_lshl_b32 {sr(S_GT)}, {sr(T2)}, 3")
        a(f"s_add_u32 {sr(S_GT)}, {sr(S_GT)}, {G_OFF}")
        a(f"v_lshlrev_b32 {vr(V_GO)}, 5, v0")
        a(f"v_mov_b32 {vr(V_GS)}, 0x7ffffff0")
        a("v_cmp_gt_u32 vcc, 36, v0")
        a(f"v_cndmask_b32 {vr(V_GO)}, {vr(V_GS)}, {vr(V_GO)}, vcc")
        w_dma(3)
        a.vm(f"buffer_load_dwordx4 {vr(xreg(32),4)}, {vr(V_GO)}, {sr(SRD_X,4)}, {sr(S_GX)} offen", "gate")
        a.vm(f"buffer_load_dwordx4 {vr(xreg(33),4)}, {vr(V_GO)}, {sr(SRD_X,4)}, {sr(S_GX)} offen offset:16", "gate")
        a.vm(f"buffer_load_dwordx4 {vr(xreg(34),4)}, {vr(V_GO)}, {sr(SRD_GATE,4)}, 0 offen", "gate")
        a.vm(f"buffer_load_dwordx4 {vr(xreg(35),4)}, {vr(V_GO)}, {sr(SRD_GATE,4)}, 0 offen offset:16", "gate")
        a("v_cmp_eq_u32 vcc, 63, v0")
        a(f"v_cndmask_b32 {vr(V_GS)}, {vr(V_GS)}, 0, vcc")
        a(f"v_lshlrev_b32 {vr(V_L16)}, 4, v0")
        a("v_and_b32 v1, 31, v0")
        a(f"v_lshrrev_b32 {vr(V_QST)}, 5, v0")
        a(f"v_lshlrev_b32 {vr(V_QST)}, 4, {vr(V_QST)}")
        a(f"v_lshl_add_u32 {vr(V_QST)}, v1, 5, {vr(V_QST)}")
        a(f"s_lshr_b32 {sr(T2)}, {sr(T0)}, 5")
        a(f"s_mul_i32 {sr(S_QS)}, {sr(T2)}, {QKVT_BLK}")
        a(f"s_lshl_b32 {sr(T3)}, {sr(S_M)}, 11")
        a(f"s_add_u32 {sr(S_QS)}, {sr(S_QS)}, {sr(T3)}")
        a(f"s_add_u32 {sr(S_QS1)}, {sr(S_QS)}, {QKVT_HALF}")
        a(f"s_mul_i32 {sr(T2)}, {sr(T2)}, {A2_TILE}")
        a(f"s_add_u32 {sr(T2)}, {sr(T2)}, {A2_OFF}")
        a(f"s_add_u32 {sr(S_H0)}, {sr(S_H0)}, {sr(T2)}")
        a(f"s_lshl_b32 {sr(T3)}, {sr(T1)}, 12")
        a(f"s_add_u32 {sr(S_H1)}, {sr(T2)}, {sr(T3)}")
        a(f"s_lshl_b32 {sr(S_H2)}, {sr(S_H2)}, 12")
        a(f"s_add_u32 {sr(S_H2)}, {sr(S_H2)}, {sr(S_H1)}")
        a(f"s_lshr_b32 {sr(T3)}, {sr(S_ME)}, 1")
        a(f"s_lshl_b32 {sr(T1)}, {sr(T3)}, 6")
        a(f"s_add_u32 {sr(S_GE)}, {sr(S_GE)}, {sr(T1)}")
        a(f"s_add_u32 {sr(S_GE)}, {sr(S_GE)}, {69*128}")
        a(f"s_lshl_b32 {sr(T3)}, {sr(T3)}, 11")
        a(f"s_add_u32 {sr(S_HE)}, {sr(T2)}, {sr(T3)}")
        a(f"s_add_u32 {sr(S_HE)}, {sr(S_HE)}, {69*4*1024}")
        ts(a, "init")
        if hooks.get("early"):
            hooks["early"]()

        BS = [int(c) for c in opt("bs", "333")]
        bq = list(range(9))
        V_TX, V_TD = TMP + 6, TMP + 7

        def touch_w():
            a(f"s_lshl_b32 {sr(T2)}, {sr(S_TB)}, 3")
            a(f"s_add_u32 {sr(T2)}, {sr(T2)}, {sr(S_W)}")
            a(f"v_and_b32 v1, 15, v0")
            a(f"v_lshl_add_u32 v1, v1, 6, {sr(T2)}")
            a(f"v_mul_u32_u24 {vr(V_TX)}, 9216, v1")
            a(f"s_bfe_u32 {sr(T3)}, {sr(S_ME)}, 0x20002")
            a(f"s_lshl_b32 {sr(T3)}, {sr(T3)}, 7")
            a(f"s_add_u32 {sr(T3)}, {sr(T3)}, {69*128}")
            a(f"v_mov_b32 v1, {sr(S_G2)}")
            a(f"v_mov_b32 {vr(V_TD)}, {sr(T3)}")
            a(f"v_cmp_gt_u32 vcc, 16, v0")
            a(f"v_cndmask_b32 v1, {vr(V_TD)}, v1, vcc")
            a(f"v_add_u32 {vr(V_TX)}, {vr(V_TX)}, v1")
            a(f"s_and_b32 {sr(T3)}, {sr(S_ME)}, 0x1f3")
            a(f"s_cmp_eq_u32 {sr(T3)}, 0")
            a(f"s_mov_b64 exec, 0x1ff")
            a(f"s_cselect_b32 exec_lo, 0x1ff01ff, exec_lo")
            a.vm(f"buffer_load_dword {vr(V_TD)}, {vr(V_TX)}, {sr(SRD_W1,4)}, 0 offen", "tch")
            a(f"s_mov_b64 exec, -1")
        NTW = int(opt("tw", "1"))

        gfl = Filler(a)
        gate_items(a, gfl)
        fl = Filler(a)
        las = [LdsAddr(a, [V_TR0]), LdsAddr(a, [V_TR1])]
        rate = int(opt("rf", "36")) if variant == "F" else int(opt("rq", "27"))
        marks = {}

        def mark(name):
            fl.push(0, lambda: marks.__setitem__(name, True))

        def push_g0(cb):
            b = ACC0 + 16 * cb
            if variant == "Q":
                for r in range(8):
                    fl.push(4, f"v_cvt_pk_bf16_f32 {vr(b+r)}, {vr(b+2*r)}, {vr(b+2*r+1)}")
                for c in range(2):
                    fl.push(4, f"buffer_store_dwordx4 {vr(b+4*c,4)}, {vr(V_QST)}, {sr(SRD_WS,4)}, {sr(S_QS1 if c else S_QS)} offen offset:{cb*1024} sc1", vmtag="st0")
            else:
                ffn_tile(fl, b, S_H0, 2 * cb, "st0")
            mark(f"g0{cb}")
            if cb == (1 if variant == "Q" else 0):
                hooks["setup"](fl)
                mark("setup")

        def rd128(la, ar, byte):
            def reads(dst, tag):
                o = la.off(byte, 512)
                a.ds(f"ds_read_b64_tr_b16 {vr(dst,2)}, {vr(ar)} offset:{o}", tag)
                a.ds(f"ds_read_b64_tr_b16 {vr(dst+2,2)}, {vr(ar)} offset:{o+512}", tag)
            return reads

        def mf(acc, ks, swap=False):
            def mfmas(src):
                c = "0" if ks == 0 else vr(acc, 16)
                if swap:
                    return [f"{MF} {vr(acc,16)}, {vr(xreg(ks),4)}, {vr(src,4)}, {c}"]
                return [f"{MF} {vr(acc,16)}, {vr(src,4)}, {vr(xreg(ks),4)}, {c}"]
            return mfmas

        def until(name):
            while not marks.get(name):
                fl._emit(fl.q.pop(0))

        NF = int(opt("nf", "5"))
        frags = []
        for n in range(9):
            full = n < NF
            if full:
                order = [(kk, g, cb) for kk in range(4) for g in range(2) for cb in range(2)]
            elif n < 8:
                order = [(kk, 0, cb) for kk in range(4) for cb in range(2)]
            else:
                order = [(kk, 0, cb) for cb in range(2) for kk in range(4)]
            acts = {i: [] for i in range(16)}

            def xrd(k, n=n):
                def f():
                    if k == 0:
                        if n == 7:
                            gfl.flush()
                        a.wait_vm(f"x{n+1}")
                    x_read(n + 1, k)
                return f

            def after_xr(fn, n=n):
                def f():
                    a.wait_ds(f"xr{n+1}")
                    fn()
                return f
            if n == 0:
                for k in range(4):
                    acts[4 + k].append(lambda k=k: (a.wait_ds("xr0"), x_dma(3, k)))
            if n >= 1 and n + 3 <= 8:
                acts[1 if full else 0].append(lambda n=n: w_dma(n + 3, 0))
                acts[3 if full else 1].append(lambda n=n: w_dma(n + 3, 1))
            if n == NTW:
                acts[9].append(touch_w)
            if n + 1 <= 8:
                for k in range(4):
                    acts[(8 if n == 0 else 4 if full else 1) + k].append(xrd(k))
                if n + 4 <= 8:
                    for k in range(4):
                        acts[12 + k].append(after_xr(lambda k=k, n=n: x_dma(n + 4, k)))
                else:
                    for k in range(3):
                        acts[12 + k if full else min(7, 6 + k)].append(after_xr(lambda: b_dma(bq.pop(0))))
            for i, (kk, g, cb) in enumerate(order):
                ks = 4 * n + kk
                f = dict(reads=rd128(las[cb], V_TR1 if cb else V_TR0, wslot(n, g) * SLOT + kk * 2048),
                         mfmas=mf((ACC1 if g else ACC0) + 16 * cb, ks, variant == "Q" and g == 0))
                if i == 0 and not (n == 7 and NF <= 6):
                    def pre(n=n):
                        if n == 0:
                            a.wait_vm("x0")
                            for kk in range(4):
                                x_read(0, kk)
                        a.wait_vm(f"W{n+1}" if (n == 6 and NF <= 6) else f"W{n}")
                        a("s_barrier")
                        ts(a, f"A{n}")
                    f["pre"] = pre

                def side(n=n, i=i, acts=acts):
                    for fn in acts[i]:
                        fn()
                    hooks["a_side"](n, i)
                f["side"] = side
                if 1 <= n <= 6:
                    f["fill"] = (gfl, 14)
                if n == 8:
                    f["fill"] = (fl, rate)
                    if i == 5:
                        f["post"] = lambda: push_g0(0)
                frags.append(f)
        R1 = 4 * (9 - NF)
        IE, ES, IEB = int(opt("ie", "33")), int(opt("es", "3")), int(opt("ieb", "88"))
        items = [(1, cb, ks) for cb in range(2) for ks in range(4 * NF, 36)] + [(2, cb, ks) for cb in range(2) for ks in range(36)]
        for i, (g, cb, ks) in enumerate(items):
            n, kk = divmod(ks, 4)
            byte = (wslot(n, 1) if g == 1 else bslot(n)) * SLOT + kk * 2048
            f = dict(reads=rd128(las[cb], V_TR1 if cb else V_TR0, byte), mfmas=mf((ACC1 if g == 1 else ACC0) + 16 * cb, ks))
            f["fill"] = (fl, rate)
            if i == 0:
                f["pre"] = lambda: ts(a, "Aend")
            if i == 1:
                f["post"] = lambda: push_g0(1)
            if i == R1 + 1:
                f["post"] = lambda: ffn_tile(fl, ACC1, S_H1, 0, "st1")
            if i == 2 * R1 + 1:
                f["post"] = lambda: (ffn_tile(fl, ACC1 + 16, S_H1, 2, "st1"), mark("h1"))
            if i == 2 * R1:
                def pre():
                    a.wait_vm("B8")
                    a("s_barrier")
                    marks["free"] = True
                f["pre"] = pre
                f["premf"] = lambda: until("g00")
            if i == IEB and variant == "Q":
                def pre():
                    lab = a.newlabel("L_noeb")
                    a(f"s_cmp_ge_u32 {sr(S_ME)}, 12")
                    a(f"s_cbranch_scc1 {lab}")
                    st = a.state()
                    a.wait_vm("E")
                    a.set_state(st)
                    a("s_barrier")
                    a.label(lab)
                f["pre"] = pre
            if i == 2 * R1 + 36:
                f["premf"] = lambda: until("g01")
            if i == 2 * R1 + 37:
                f["post"] = lambda: ffn_tile(fl, ACC0, S_H2, 0, "st2")

            def side(i=i):
                q, rem = divmod(i - IE, ES)
                if variant == "Q" and rem == 0 and 0 <= q < 5:
                    assert marks.get("free")
                    lab = a.newlabel("L_noex")
                    a(f"s_cmp_ge_u32 {sr(S_ME)}, 12")
                    a(f"s_cbranch_scc1 {lab}")
                    if q == 4:
                        a(f"s_cmp_ge_u32 {sr(S_W)}, 4")
                        a(f"s_cbranch_scc1 {lab}")
                    a(f"s_add_u32 m0, {sr(S_WL)}, {E_BASE + q*8192}")
                    a.vm(f"buffer_load_dwordx4 {vr(V_DE)}, {sr(SRD_W1,4)}, {sr(S_GE)} offen lds", "E", optional=True)
                    if q < 4:
                        a(f"s_add_u32 {sr(S_GE)}, {sr(S_GE)}, {128*9216}")
                    a.label(lab)
                hooks["b_side"](i, variant, marks)
            f["side"] = side
            frags.append(f)
        frag_pipeline(a, frags, RING, cfg.R, cfg.D)
        print(variant, "filler left at end of pass B:", fl.total())
        fl.flush()
        hooks["b_end"](variant)
        k = max(i for i, (t_, _) in enumerate(a.vmq) if t_ == "akv") if any(t_ == "akv" for t_, _ in a.vmq) else -1
        tails.append(None if k < 0 else sum(1 for (_, o) in a.vmq[k + 1:] if not o))
        if variant == "Q":
            a(f"s_branch {passB}")
    a.label(passB)
    tl = [t_ for t_ in tails if t_ is not None]
    a.vmq = ([("akv", False)] + [("st2", False)] * min(tl) if tl else []) + [("st2", True)]
    a.dsq = []
    ts(a, "Bend")
    noex = a.newlabel("L_noex2")
    done = a.newlabel("L_p1done")
    a(f"s_cmp_ge_u32 {sr(S_ME)}, 12")
    a(f"s_cbranch_scc1 {noex}")
    a(f"s_lshr_b32 {sr(T0)}, {sr(S_W)}, 2")
    a(f"s_and_b32 {sr(T1)}, {sr(S_M)}, 1")
    a(f"s_cmp_lg_u32 {sr(T0)}, {sr(T1)}")
    a(f"s_cbranch_scc1 {noex}")
    saved = a.state()
    fl = Filler(a)
    ffn_tile(fl, ACC0 + 16, S_H2, 2, "st2")
    frags = []
    for ks in range(36):
        def reads(dst, tag, ks=ks):
            a.ds(f"ds_read_b64_tr_b16 {vr(dst,2)}, {vr(V_TRE)} offset:{ks*1024}", tag)
            a.ds(f"ds_read_b64_tr_b16 {vr(dst+2,2)}, {vr(V_TRE)} offset:{ks*1024+256}", tag)

        def mfmas(src, ks=ks):
            c = "0" if ks == 0 else vr(ACC1, 16)
            return [f"{MF} {vr(ACC1,16)}, {vr(src,4)}, {vr(xreg(ks),4)}, {c}"]
        frags.append(dict(reads=reads, mfmas=mfmas, fill=(fl, 28)))
    frag_pipeline(a, frags, RING, cfg.R, cfg.D)
    fl.flush()
    a.wait_vm("akv")
    hooks["gcheck"]()
    a(f"v_and_b32 v1, 0xffff0000, {vr(V_G2)}")
    ffn_tile(fl, ACC1, S_HE, 0, "stE", scale=1)
    fl.flush()
    hooks["hflag"]()
    a(f"s_branch {done}")
    a.label(noex)
    a.set_state(saved)
    fl = Filler(a)
    ffn_tile(fl, ACC0 + 16, S_H2, 2, "st2")
    fl.flush()
    a.label(done)
    ts(a, "P1end")
```

```python
from common import *
import sync

K_BASE, V_BASE, Q_BASE, TP, HP = 0, 20480, 40960, 1280, 640
ST = 16
OACC = 160
KR = 176
QF = 194
VRING = 200
V_MX = 216
V_G, V_NM, V_SC = 220, 222, 221
V_AL16, V_ADV, V_PADA, V_PADD = 12, 13, 5, 8
V_POFF, V_PDAT = 252, 253
V_KA, V_KT, V_VA, V_QA, V_QT, V_OT = 8, 9, 4, 5, 6, 7
(S_KS, S_QSO, S_OM, S_OT, S_C, S_GS, S_LW, S_LW2) = range(S_A + 16, S_A + 24)
MF = "v_mfma_f32_32x32x16_bf16"
MF8 = "v_mfma_f32_32x32x8_bf16"
NEGBIG = 0xF149F149
ONES = 0x3F803F80


def sreg(t):
    return ST + 16 * t


def dma_setup(a):
    T0, T1 = S_T0, S_T0 + 1
    a(f"s_lshl_b32 {sr(T0)}, {sr(S_TB)}, 3")
    a(f"s_lshl_b32 {sr(T1)}, {sr(S_W)}, 1")
    a(f"s_add_u32 {sr(T1)}, {sr(T1)}, {sr(T0)}")
    a(f"s_sub_u32 {sr(S_KS)}, {sr(T1)}, 8")
    a(f"s_cmp_lt_u32 {sr(T1)}, 8")
    a(f"s_cselect_b32 {sr(S_KS)}, {sr(T1)}, {sr(S_KS)}")
    a(f"s_cselect_b32 {sr(S_OM)}, 0x{NEGBIG:08x}, 0")
    a(f"s_mul_i32 {sr(S_OT)}, {sr(S_M)}, 18")
    a(f"v_bfe_u32 v1, v0, 1, 1")
    a(f"v_add_u32 v1, 1, v1")
    a(f"v_mul_u32_u24 v1, 576, v1")
    a(f"v_bfe_u32 {vr(V_PDAT)}, v0, 3, 1")
    a(f"v_add_u32 {vr(V_PDAT)}, {sr(S_KS)}, {vr(V_PDAT)}")
    a(f"s_add_u32 {sr(S_C)}, {sr(T0)}, {sr(S_W)}")
    a(f"v_mov_b32 {vr(V_POFF)}, {sr(S_C)}")
    a(f"v_and_b32 {vr(V_ADV)}, 4, v0")
    a(f"v_cmp_eq_u32 vcc, 0, {vr(V_ADV)}")
    a(f"v_cndmask_b32 v1, 0, v1, vcc")
    a(f"v_cndmask_b32 {vr(V_PDAT)}, {vr(V_POFF)}, {vr(V_PDAT)}, vcc")
    a(f"v_and_b32 {vr(V_POFF)}, 1, v0")
    a(f"v_mul_u32_u24 {vr(V_POFF)}, 17, {vr(V_POFF)}")
    a(f"v_add3_u32 v1, v1, {vr(V_POFF)}, {sr(S_OT)}")
    a(f"v_lshrrev_b32 v1, 6, v1")
    a(f"v_lshl_add_u32 v1, {vr(V_PDAT)}, 5, v1")
    a(f"v_lshlrev_b32 {vr(V_POFF)}, 2, v1")
    a(f"s_lshl_b32 {sr(S_GS)}, {sr(S_C)}, 8")
    a(f"s_add_u32 {sr(S_GS)}, {sr(S_GS)}, {G_OFF}")
    a(f"s_mul_i32 {sr(S_KS)}, {sr(S_KS)}, {QKVT_BLK}")
    a(f"s_mul_i32 {sr(T1)}, {sr(S_M)}, {18*32}")
    a(f"s_add_u32 {sr(S_KS)}, {sr(S_KS)}, {sr(T1)}")
    a(f"s_add_u32 {sr(S_KS)}, {sr(S_KS)}, {QKVT_OFF + 576*32}")
    a(f"s_add_u32 {sr(T0)}, {sr(T0)}, {sr(S_W)}")
    a(f"s_mul_i32 {sr(S_QSO)}, {sr(T0)}, {QKVT_BLK}")
    a(f"s_add_u32 {sr(S_QSO)}, {sr(S_QSO)}, {sr(T1)}")
    if QKVT_OFF:
        a(f"s_add_u32 {sr(S_QSO)}, {sr(S_QSO)}, {QKVT_OFF}")
    a(f"s_mul_i32 {sr(S_LW)}, {sr(S_W)}, {TP}")
    a(f"s_lshl_b32 {sr(S_LW2)}, {sr(S_LW)}, 1")
    a(f"v_lshlrev_b32 {vr(V_AL16)}, 4, v0")
    a(f"v_bfe_u32 v1, v0, 4, 1")
    a(f"v_xor_b32 v1, v1, v0")
    a(f"v_lshlrev_b32 {vr(V_ADV)}, 4, v1")
    a(f"v_bfe_u32 v1, v0, 2, 2")
    a(f"v_mul_u32_u24 {vr(V_PADA)}, {HP}, v1")
    a(f"v_and_b32 v1, 3, v0")
    a(f"v_lshl_add_u32 {vr(V_PADA)}, v1, 4, {vr(V_PADA)}")
    a(f"v_lshrrev_b32 v1, 4, v0")
    a(f"v_mul_u32_u24 v1, {V_BASE}, v1")
    a(f"v_add3_u32 {vr(V_PADA)}, {vr(V_PADA)}, v1, {sr(S_LW)}")
    a(f"v_mov_b32 v1, {sr(S_LW)}")
    a(f"v_cmp_gt_u32 vcc, 32, v0")
    a(f"v_cndmask_b32 v1, 0, v1, vcc")
    a(f"v_add_u32 {vr(V_PADA)}, {vr(V_PADA)}, v1")
    a(f"v_mov_b32 {vr(V_PADD)}, 0x{ONES:08x}")
    a(f"v_mov_b32 v1, {sr(S_OM)}")
    a(f"v_cmp_gt_u32 vcc, 16, v0")
    a(f"v_cndmask_b32 {vr(V_PADD)}, {vr(V_PADD)}, v1, vcc")
    a(f"v_and_b32 v1, 0x32, v0")
    a(f"v_cmp_eq_u32 vcc, 0x02, v1")
    a(f"v_cndmask_b32 {vr(V_PADD)}, {vr(V_PADD)}, 0, vcc")
    a(f"v_cmp_eq_u32 vcc, 0x22, v1")
    a(f"v_cndmask_b32 {vr(V_PADD)}, {vr(V_PADD)}, 0, vcc")
    for r in range(1, 4):
        a(f"v_mov_b32 {vr(V_PADD+r)}, {vr(V_PADD)}")


def pad_write(a):
    a("s_mov_b32 exec_hi, 0xff")
    a.ds(f"ds_write_b128 {vr(V_PADA)}, {vr(V_PADD,4)} offset:576", "pad")
    a("s_mov_b32 exec_hi, -1")


def dma_list():
    L = []
    L.append((Q_BASE, 1, S_QSO, 0, V_AL16))
    L.append((Q_BASE + HP, 1, S_QSO, QKVT_HALF, V_AL16))
    for t in range(2):
        for c in range(2):
            L.append((K_BASE + t * TP + c * HP, 2, S_KS, t * QKVT_BLK + c * QKVT_HALF, V_AL16))
    for t in range(2):
        for c in range(2):
            L.append((V_BASE + t * TP + c * HP, 2, S_KS, t * QKVT_BLK + c * QKVT_HALF + 576 * 32, V_ADV))
    return L


def dma_issue(a, items):
    T0 = S_T0
    if not items:
        return
    a("s_mov_b32 exec_hi, 0xf")
    for (lc, wf, s, goff, voff) in items:
        a(f"s_add_u32 m0, {sr(S_LW if wf == 1 else S_LW2)}, {lc}")
        a(f"s_add_u32 {sr(T0)}, {sr(s)}, {goff}")
        a.vm(f"buffer_load_dwordx4 {vr(voff)}, {sr(SRD_WS,4)}, {sr(T0)} offen sc1 lds", "akv")
    a("s_mov_b32 exec_hi, -1")


def setup_regs(a):
    T0, T1 = S_T0, S_T0 + 1
    a(f"s_lshl_b32 {sr(T0)}, {sr(S_TB)}, 3")
    a(f"s_add_u32 {sr(T0)}, {sr(T0)}, {sr(S_W)}")
    a(f"s_mul_i32 {sr(T0)}, {sr(T0)}, {A2_TILE}")
    a(f"s_lshl_b32 {sr(T1)}, {sr(S_M)}, 10")
    a(f"s_add_u32 {sr(S_OM)}, {sr(T0)}, {sr(T1)}")
    a(f"s_add_u32 {sr(S_OM)}, {sr(S_OM)}, {A2_OFF + 288*1024}")
    a(f"s_lshr_b32 {sr(T1)}, {sr(S_M)}, 2")
    a(f"s_lshl_b32 {sr(T1)}, {sr(T1)}, 9")
    a(f"s_add_u32 {sr(S_OT)}, {sr(T0)}, {sr(T1)}")
    a(f"s_and_b32 {sr(T1)}, {sr(S_M)}, 3")
    a(f"s_lshl_b32 {sr(T1)}, {sr(T1)}, 2")
    a(f"s_add_u32 {sr(S_OT)}, {sr(S_OT)}, {sr(T1)}")
    a(f"s_add_u32 {sr(S_OT)}, {sr(S_OT)}, {A2_OFF + 320*1024}")
    a(f"s_mov_b32 {sr(S_C)}, 0x{f32bits(QSCALE):08x}")
    a(f"v_lshlrev_b32 {vr(V_OT)}, 4, v0")
    a(f"v_mov_b32 v1, 0x7ffffff0")
    a(f"v_cmp_gt_u32 vcc, 32, v0")
    a(f"v_cndmask_b32 {vr(V_OT)}, v1, {vr(V_OT)}, vcc")
    a(f"v_bfe_u32 v1, v0, 4, 1")
    a(f"v_mul_u32_u24 {vr(V_KT)}, {HP}, v1")
    a(f"v_and_b32 v1, 1, v0")
    a(f"v_lshl_add_u32 {vr(V_KT)}, v1, 4, {vr(V_KT)}")
    a(f"v_bfe_u32 v1, v0, 1, 1")
    a(f"v_lshl_add_u32 {vr(V_KT)}, v1, 3, {vr(V_KT)}")
    a(f"v_add_u32 {vr(V_KT)}, {sr(S_LW)}, {vr(V_KT)}")
    a(f"v_bfe_u32 v1, v0, 2, 2")
    a(f"v_mov_b32 {vr(V_QT)}, 3")
    a(f"v_cndmask_b32 {vr(V_QT)}, {vr(V_QT)}, v1, vcc")
    a(f"v_lshl_add_u32 {vr(V_QT)}, {vr(V_QT)}, 5, {vr(V_KT)}")
    a(f"v_lshl_add_u32 {vr(V_KT)}, v1, 5, {vr(V_KT)}")
    a(f"v_lshrrev_b32 v1, 5, v0")
    a(f"v_lshl_add_u32 {vr(V_KA)}, v1, 8, {vr(V_KT)}")
    a(f"v_and_b32 {vr(V_VA)}, 31, v0")
    a(f"v_and_b32 v1, 1, v0")
    a(f"v_add_u32 v1, 18, v1")
    a(f"v_min_u32 {vr(V_VA)}, {vr(V_VA)}, v1")
    a(f"v_bfe_u32 v1, {vr(V_VA)}, 3, 1")
    a(f"v_lshlrev_b32 {vr(V_VA)}, 5, {vr(V_VA)}")
    a(f"v_lshrrev_b32 {vr(V_QA)}, 5, v0")
    a(f"v_xor_b32 v1, v1, {vr(V_QA)}")
    a(f"v_lshl_add_u32 {vr(V_VA)}, v1, 4, {vr(V_VA)}")
    a(f"v_add_u32 {vr(V_VA)}, {sr(S_LW)}, {vr(V_VA)}")
    a(f"v_and_b32 v1, 31, v0")
    a(f"v_lshlrev_b32 {vr(V_QA)}, 2, {vr(V_QA)}")
    a(f"v_sub_u32 v1, v1, {vr(V_QA)}")
    a(f"v_mov_b32 {vr(V_QA)}, 0x{f32bits(-1e30):08x}")
    for r in range(16):
        kap = 8 * (r >> 2) + (r & 3)
        sp = S_T0 + 2 * (r & 3)
        a(f"v_cmp_le_i32 {sr(sp,2)}, {kap}, v1")
        if (r & 3) == 3:
            for rr in range(r - 3, r + 1):
                sp = S_T0 + 2 * (rr & 3)
                a(f"v_cndmask_b32 {vr(sreg(8)+rr)}, {vr(V_QA)}, 0, {sr(sp,2)}")
                a(f"v_cndmask_b32 {vr(sreg(0)+rr)}, 0, {vr(V_QA)}, {sr(sp,2)}")


def compute(a, hooks=None):
    hooks = hooks or {}
    a.ds(f"ds_read_b64_tr_b16 {vr(QF,2)}, {vr(V_KA)} offset:{Q_BASE}", "q")
    a.ds(f"ds_read_b64_tr_b16 {vr(QF+2,2)}, {vr(V_KA)} offset:{Q_BASE+128}", "q")
    a.ds(f"ds_read_b64_tr_b16 {vr(QF+4,2)}, {vr(V_QT)} offset:{Q_BASE+512}", "q")
    fl = Filler(a)

    def push_max(t):
        b = sreg(t)
        for i in range(8):
            m = V_MX + (i & 3)
            if t == 0 and i < 4:
                fl.push(4, f"v_max_f32 {vr(m)}, {vr(b+2*i)}, {vr(b+2*i+1)}")
            else:
                fl.push(4, f"v_max3_f32 {vr(m)}, {vr(b+2*i)}, {vr(b+2*i+1)}, {vr(m)}")

    frags = []
    for t in range(9):
        def reads(dst, tag, t=t):
            o = K_BASE + t * TP
            a.ds(f"ds_read_b64_tr_b16 {vr(dst,2)}, {vr(V_KA)} offset:{o}", tag)
            a.ds(f"ds_read_b64_tr_b16 {vr(dst+2,2)}, {vr(V_KA)} offset:{o+128}", tag)
            a.ds(f"ds_read_b64_tr_b16 {vr(dst+4,2)}, {vr(V_KT)} offset:{o+512}", tag)

        def mfmas(src, t=t):
            d = vr(sreg(t), 16)
            c = d if t in (0, 8) else "0"
            return [f"{MF} {d}, {vr(src,4)}, {vr(QF,4)}, {c}", f"{MF8} {d}, {vr(src+4,2)}, {vr(QF+4,2)}, {d}"]

        def premf(t=t):
            if t >= 2:
                push_max(t - 2)
        f = dict(reads=reads, mfmas=mfmas, premf=premf, fill=(fl, 16))
        if hooks.get("qk"):
            f["post"] = (lambda t=t: hooks["qk"](t))
        frags.append(f)
    frag_pipeline(a, frags, KR, 3, 2, rsz=6)

    def vread(i):
        t, c = i >> 1, i & 1
        a.ds(f"ds_read_b128 {vr(VRING+4*(i%4),4)}, {vr(V_VA)} offset:{V_BASE + t*TP + c*HP}", f"v{i}")
    for i in range(3):
        vread(i)
    push_max(7)
    push_max(8)
    fl.flush()
    a(f"v_max3_f32 {vr(V_MX)}, {vr(V_MX)}, {vr(V_MX+1)}, {vr(V_MX+2)}")
    a(f"v_max_f32 {vr(V_MX)}, {vr(V_MX)}, {vr(V_MX+3)}")
    a(f"v_mov_b32 {vr(V_MX+1)}, {vr(V_MX)}")
    a(f"v_permlane32_swap_b32 {vr(V_MX)}, {vr(V_MX+1)}")
    a(f"v_max_f32 {vr(V_MX)}, {vr(V_MX)}, {vr(V_MX+1)}")
    a(f"v_mul_f32 {vr(V_NM)}, {sr(S_C)}, {vr(V_MX)}")
    if hooks.get("mid"):
        hooks["mid"]()
    for i in range(18 + 1):
        if i < 18:
            b = sreg(i >> 1) + 8 * (i & 1)
            if "nopkf" not in cfg.dbg:
                for r in range(0, 8, 2):
                    a(f"v_pk_fma_f32 {vr(b+r,2)}, {vr(b+r,2)}, {sr(S_C,2)}, {vr(V_NM,2)} op_sel_hi:[1,0,0] neg_lo:[0,0,1] neg_hi:[0,0,1]")
            else:
                for r in range(8):
                    a(f"v_fma_f32 {vr(b+r)}, {vr(b+r)}, {sr(S_C)}, -{vr(V_NM)}")
            for r in range(4):
                a(f"v_exp_f32 {vr(b+r)}, {vr(b+r)}")
        if i >= 1:
            j = i - 1
            pb = sreg(j >> 1) + 8 * (j & 1)
            a.wait_ds(f"v{j}")
            c = "0" if j == 0 else vr(OACC, 16)
            a(f"{MF} {vr(OACC,16)}, {vr(VRING+4*(j%4),4)}, {vr(pb,4)}, {c}")
            if j + 3 < 18:
                vread(j + 3)
            if hooks.get("pv"):
                hooks["pv"](j)
        if i < 18:
            for r in range(4, 8):
                a(f"v_exp_f32 {vr(b+r)}, {vr(b+r)}")
            for r in range(4):
                a(f"v_cvt_pk_bf16_f32 {vr(b+r)}, {vr(b+2*r)}, {vr(b+2*r+1)}")
    a(f"v_rcp_f32 {vr(V_SC)}, {vr(OACC+10)}")
    a(f"v_mul_f32 {vr(V_SC)}, {vr(V_SC)}, {vr(V_G)}")
    for r in range(10):
        a(f"v_mul_f32 {vr(OACC+r)}, {vr(OACC+r)}, {vr(V_SC)}")
    for r in range(5):
        a(f"v_cvt_pk_bf16_f32 {vr(OACC+r)}, {vr(OACC+2*r)}, {vr(OACC+2*r+1)}")
    a.vm(f"buffer_store_dwordx4 {vr(OACC,4)}, {vr(V_AL16)}, {sr(SRD_WS,4)}, {sr(S_OM)} offen sc1", "ost")
    a.vm(f"buffer_store_dword {vr(OACC+4)}, {vr(V_OT)}, {sr(SRD_WS,4)}, {sr(S_OT)} offen sc1", "ost")


def g_load(a):
    a("v_and_b32 v1, 31, v0")
    a("v_lshlrev_b32 v1, 3, v1")
    a.vm(f"buffer_load_dwordx2 v[2:3], v1, {sr(SRD_WS,4)}, {sr(S_GS)} offen sc1", "ag")


def g_check(a):
    done = a.newlabel("L_gd")
    loop = a.newlabel("L_gl")
    a(f"s_mov_b32 {sr(sync.S_CNT)}, {sync.SPIN}")
    a.label(loop)
    a(f"v_cmp_ne_u32 vcc, {sr(S_NONCE)}, v3")
    a("s_nop 4")
    a(f"s_cbranch_vccz {done}")
    a("v_and_b32 v1, 31, v0")
    a("v_lshlrev_b32 v1, 3, v1")
    a(f"buffer_load_dwordx2 v[2:3], v1, {sr(SRD_WS,4)}, {sr(S_GS)} offen sc1")
    a("s_waitcnt vmcnt(0)")
    a(f"s_sub_u32 {sr(sync.S_CNT)}, {sr(sync.S_CNT)}, 1")
    a(f"s_cmp_lg_u32 {sr(sync.S_CNT)}, 0")
    a(f"s_cbranch_scc1 {loop}")
    a.label(done)
```

```python
from common import *
import sync

RS = 20480
MINI = 53248
NE = 68
H2ST = 9
LATE = 17
HD = 5
ACC = 80
HB = 16
HBM = HB + 8 * HD
RING = 60
XB = 160
V_WD, V_WT, V_A, V_L16, V_OMG, V_F2, V_T = 224, 227, 230, 235, 236, 237, 238
SRD_WC = 84
(S_S, S_WSO, S_STEP, S_HO, S_WOB, S_TLB, S_LD, S_KH, S_TG, S_NT5, S_PB, S_FB, S_OUT, S_OUTS, S_GO, S_SD) = range(S_A, S_A + 16)
S_MSO, S_X1, S_X2, S_X3 = 88, 89, 90, 91
MF = "v_mfma_f32_32x32x16_bf16"


def HSC():
    for k in cfg.dbg:
        if k.startswith("hsc="):
            return " " + k[4:].replace("+", " ")
    return " sc1"


def slot(st):
    return (3 + st) % 8


def hreg(st, i):
    return HB + ((st % HD) * 2 + i) * 4


def setup_dma(a):
    T0, T1, T2 = S_T0, S_T0 + 1, S_T0 + 2
    a(f"s_lshr_b32 {sr(S_S)}, {sr(S_XC)}, 1")
    a(f"s_mov_b64 {sr(SRD_WC,2)}, {sr(SRD_W2,2)}")
    a(f"s_mov_b32 {sr(SRD_WC+2)}, {4608*1152}")
    a(f"s_mov_b32 {sr(SRD_WC+3)}, 0x00020000")
    a(f"s_lshr_b32 {sr(T0)}, {sr(S_J)}, 1")
    a(f"s_mul_i32 {sr(T0)}, {sr(T0)}, 576")
    a(f"s_and_b32 {sr(T1)}, {sr(S_J)}, 1")
    a(f"s_lshl_b32 {sr(T2)}, {sr(T1)}, 8")
    a(f"s_add_u32 {sr(T0)}, {sr(T0)}, {sr(T2)}")
    a(f"s_lshl_b32 {sr(T1)}, {sr(T1)}, 2")
    a(f"s_cmp_eq_u32 {sr(S_S)}, 3")
    a(f"s_cselect_b32 {sr(T2)}, 1152, 0")
    for i in range(3):
        r, q, t = V_T, V_T + 1, V_T + 2
        a(f"v_add_u32 v1, {64*i}, v0")
        a(f"v_mul_u32_u24 {vr(r)}, 205, v1")
        a(f"v_lshrrev_b32 {vr(r)}, 12, {vr(r)}")
        a(f"v_mul_u32_u24 {vr(q)}, 20, {vr(r)}")
        a(f"v_sub_u32 {vr(q)}, v1, {vr(q)}")
        a(f"v_add_u32 {vr(q)}, {sr(T1)}, {vr(q)}")
        a(f"v_subrev_u32 v1, 20, {vr(q)}")
        a(f"v_min_u32 {vr(q)}, {vr(q)}, v1")
        a(f"v_mul_u32_u24 v1, 1152, {vr(r)}")
        a(f"v_lshl_add_u32 v1, {vr(q)}, 4, v1")
        a(f"v_add_u32 {vr(V_WD+i)}, {sr(T0)}, v1")
        a(f"v_lshrrev_b32 {vr(q)}, 2, {vr(r)}")
        a(f"v_mul_u32_u24 {vr(q)}, 68, {vr(q)}")
        a(f"v_bfe_u32 {vr(t)}, {vr(r)}, 1, 1")
        a(f"v_lshl_add_u32 {vr(q)}, {vr(t)}, 4, {vr(q)}")
        a(f"v_mul_u32_u24 {vr(q)}, {sr(T2)}, {vr(q)}")
        a(f"v_add_u32 {vr(V_WT+i)}, {vr(V_WD+i)}, {vr(q)}")
    a(f"s_mul_i32 {sr(T0)}, {sr(S_S)}, {16*1152}")
    a(f"s_mul_i32 {sr(T1)}, {sr(S_W)}, {2*1152}")
    a(f"s_add_u32 {sr(S_MSO)}, {sr(T0)}, {sr(T1)}")
    a(f"s_add_u32 {sr(S_MSO)}, {sr(S_MSO)}, {272*16*1152}")
    a(f"s_mul_i32 {sr(T0)}, {sr(T0)}, {NE}")
    a(f"s_lshl_b32 {sr(T1)}, {sr(T1)}, 2")
    a(f"s_add_u32 {sr(S_WSO)}, {sr(T0)}, {sr(T1)}")
    a(f"s_mov_b32 {sr(S_STEP)}, {64*1152}")
    a(f"s_lshr_b32 {sr(T0)}, {sr(S_W)}, 1")
    a(f"s_mul_i32 {sr(T2)}, {sr(T0)}, {2*1152}")
    a(f"s_mul_i32 {sr(S_WOB)}, {sr(S_S)}, {216*1152}")
    a(f"s_add_u32 {sr(S_WOB)}, {sr(S_WOB)}, {sr(T2)}")
    a(f"s_sub_u32 {sr(S_WOB)}, {sr(S_WOB)}, {216*1152}")
    a(f"s_cmp_eq_u32 {sr(S_S)}, 0")
    a(f"s_cselect_b32 {sr(S_WOB)}, {4416*1152}, {sr(S_WOB)}")
    a(f"s_add_u32 {sr(S_WOB)}, {sr(S_WOB)}, {sr(T1)}")
    a(f"s_mul_i32 {sr(S_TLB)}, {sr(T0)}, {144*1152}")
    a(f"s_and_b32 {sr(T0)}, {sr(S_W)}, 1")
    a(f"s_mul_i32 {sr(T0)}, {sr(T0)}, {36*1152}")
    a(f"s_add_u32 {sr(S_TLB)}, {sr(S_TLB)}, {sr(T0)}")
    a(f"s_add_u32 {sr(S_TLB)}, {sr(S_TLB)}, {16*1152}")
    a(f"s_mul_i32 {sr(S_LD)}, {sr(S_W)}, 2560")


def mini_dma(a):
    a(f"s_mul_i32 {sr(S_T0)}, {sr(S_W)}, 640")
    a(f"s_add_u32 m0, {sr(S_T0)}, {MINI}")
    a("s_mov_b32 exec_hi, 0xff")
    a.vm(f"buffer_load_dwordx4 {vr(V_WD)}, {sr(SRD_WC,4)}, {sr(S_MSO)} offen{pol('w2')} lds", "Wm")
    a("s_mov_b32 exec_hi, -1")


def w_dma(a, st, i):
    if i == 0 and st == LATE:
        a(f"s_mov_b32 {sr(S_WSO)}, {sr(S_WOB)}")
        a(f"s_cmp_lg_u32 {sr(S_S)}, 0")
        a(f"s_cselect_b32 {sr(S_STEP)}, {72*1152}, {sr(S_STEP)}")
        a(f"s_cselect_b64 {sr(SRD_WC,2)}, {sr(SRD_WO,2)}, {sr(SRD_W2,2)}")
        a(f"s_cselect_b32 {sr(SRD_WC+2)}, {sr(SRD_WO+2)}, {sr(SRD_W2+2)}")
    if i == 0 and st == 19:
        a(f"s_cmp_eq_u32 {sr(S_S)}, 3")
        a(f"s_cselect_b32 {sr(S_WSO)}, {sr(S_TLB)}, {sr(S_WSO)}")
    a(f"s_add_u32 m0, {sr(S_LD)}, {slot(st)*RS + i*1024}")
    if i == 2:
        a("s_mov_b32 exec_hi, 0")
    v = (V_WT if st == 19 else V_WD) + i
    if ("now2" in cfg.dbg and st >= 5) or ("no3rd" in cfg.dbg and i == 2):
        a.vmq.append((f"W{st}", True))
    else:
      a.vm(f"buffer_load_dwordx4 {vr(v)}, {sr(SRD_WC,4)}, {sr(S_WSO)} offen{pol('w2')} lds", f"W{st}")
    if i == 2:
        a("s_mov_b32 exec_hi, -1")
        if st < 19:
            a(f"s_add_u32 {sr(S_WSO)}, {sr(S_WSO)}, {sr(S_STEP)}")


def setup_rest(a):
    T0, T1, T2, T3 = S_T0, S_T0 + 1, S_T0 + 2, S_T0 + 3
    a(f"s_lshr_b32 {sr(S_KH)}, {sr(S_W)}, 2")
    a(f"s_lshl_b32 {sr(T0)}, {sr(S_KH)}, 1")
    a(f"s_and_b32 {sr(S_TG)}, {sr(S_W)}, 3")
    a(f"s_xor_b32 {sr(S_TG)}, {sr(S_TG)}, {sr(T0)}")
    a(f"s_lshr_b32 {sr(T0)}, {sr(S_TG)}, 1")
    a(f"s_and_b32 {sr(T1)}, {sr(S_J)}, 1")
    a(f"s_cmp_eq_u32 {sr(T0)}, {sr(T1)}")
    a(f"s_cselect_b32 {sr(S_NT5)}, 1, 0")
    a(f"s_lshl_b32 {sr(T0)}, {sr(S_TB)}, 1")
    a(f"s_and_b32 {sr(T1)}, {sr(S_XC)}, 1")
    a(f"s_add_u32 {sr(T0)}, {sr(T0)}, {sr(T1)}")
    a(f"s_lshl_b32 {sr(T1)}, {sr(T0)}, 2")
    a(f"s_add_u32 {sr(T2)}, {sr(T1)}, {sr(S_J)}")
    a(f"s_add_u32 {sr(T1)}, {sr(T1)}, {sr(S_TG)}")
    a(f"s_mul_i32 {sr(S_HO)}, {sr(T1)}, {A2_TILE}")
    a(f"s_add_u32 {sr(S_HO)}, {sr(S_HO)}, {A2_OFF}")
    a(f"s_lshl_b32 {sr(T3)}, {sr(S_S)}, 10")
    a(f"s_add_u32 {sr(S_X1)}, {sr(S_HO)}, {sr(T3)}")
    a(f"s_add_u32 {sr(S_X1)}, {sr(S_X1)}, {272*1024}")
    a(f"s_mul_i32 {sr(T3)}, {sr(T3)}, {NE}")
    a(f"s_add_u32 {sr(S_HO)}, {sr(S_HO)}, {sr(T3)}")
    a(f"s_lshl_b32 {sr(T3)}, {sr(S_KH)}, 11")
    a(f"s_add_u32 {sr(S_HO)}, {sr(S_HO)}, {sr(T3)}")
    a(f"s_lshl_b32 {sr(S_GO)}, {sr(T1)}, 8")
    a(f"s_add_u32 {sr(S_GO)}, {sr(S_GO)}, {G_OFF}")
    a(f"s_mul_i32 {sr(S_PB)}, {sr(T2)}, {16*9216}")
    a(f"s_add_u32 {sr(S_PB)}, {sr(S_PB)}, {P_OFF}")
    a(f"s_lshl_b32 {sr(S_FB)}, {sr(T2)}, 7")
    a(f"s_lshl_b32 {sr(T3)}, {sr(S_W)}, 4")
    a(f"s_add_u32 {sr(S_FB)}, {sr(S_FB)}, {sr(T3)}")
    a(f"s_add_u32 {sr(S_FB)}, {sr(S_FB)}, {sync.FL_P}")
    a(f"s_mul_i32 {sr(S_OUT)}, {sr(T1)}, {32*1152}")
    a(f"s_lshr_b32 {sr(T0)}, {sr(S_J)}, 1")
    a(f"s_mul_i32 {sr(T0)}, {sr(T0)}, 576")
    a(f"s_add_u32 {sr(S_OUT)}, {sr(S_OUT)}, {sr(T0)}")
    a(f"s_lshl_b32 {sr(T0)}, {sr(S_KH)}, 5")
    a(f"s_add_u32 {sr(S_OUTS)}, {sr(S_OUT)}, {sr(T0)}")
    a(f"s_add_u32 {sr(S_OUTS)}, {sr(S_OUTS)}, 256")
    a(f"s_and_b32 {sr(T0)}, {sr(S_J)}, 1")
    a(f"s_mul_i32 {sr(T0)}, {sr(T0)}, 320")
    a(f"s_add_u32 {sr(S_OUT)}, {sr(S_OUT)}, {sr(T0)}")
    a(f"s_lshl_b32 {sr(T0)}, {sr(S_KH)}, 2")
    a(f"s_xor_b32 {sr(T0)}, {sr(T0)}, {sr(S_S)}")
    a(f"s_lshl_b32 {sr(T1)}, {sr(T0)}, 5")
    a(f"s_add_u32 {sr(S_OUT)}, {sr(S_OUT)}, {sr(T1)}")
    a(f"s_and_b32 {sr(S_SD)}, {sr(S_TG)}, 1")
    a(f"s_lshl_b32 {sr(S_SD)}, {sr(S_SD)}, 1")
    a(f"s_add_u32 {sr(S_SD)}, {sr(S_SD)}, {sr(S_KH)}")
    b, dh = V_T, V_T + 1
    a("v_bfe_u32 v1, v0, 2, 2")
    a(f"v_lshrrev_b32 {vr(b)}, 5, v0")
    a(f"v_lshl_add_u32 v1, {vr(b)}, 2, v1")
    a(f"v_mul_u32_u24 {vr(b)}, 320, v1")
    a("v_and_b32 v1, 3, v0")
    a(f"v_lshl_add_u32 {vr(b)}, v1, 3, {vr(b)}")
    a(f"s_mul_i32 {sr(T1)}, {sr(S_KH)}, 10240")
    a(f"s_add_u32 {sr(T1)}, {sr(T1)}, {MINI}")
    a(f"v_add_u32 {vr(b)}, {sr(T1)}, {vr(b)}")
    a(f"v_bfe_u32 {vr(dh)}, v0, 4, 1")
    a(f"v_xor_b32 v1, {sr(T0)}, {vr(dh)}")
    for t in range(4):
        a(f"v_xor_b32 {vr(V_A+t)}, {2*t}, v1")
        a(f"v_lshl_add_u32 {vr(V_A+t)}, {vr(V_A+t)}, 5, {vr(b)}")
    a(f"v_xor_b32 v1, {sr(S_KH)}, {vr(dh)}")
    a(f"v_lshl_add_u32 {vr(V_A+4)}, v1, 5, {vr(b)}")
    a(f"v_add_u32 {vr(V_A+4)}, 256, {vr(V_A+4)}")
    a(f"v_lshlrev_b32 {vr(V_L16)}, 4, v0")


def h_mini(a):
    a(f"s_lshl_b32 {sr(S_T0)}, {sr(S_KH)}, 30")
    a(f"v_add_u32 v1, {sr(S_T0)}, {vr(V_L16)}")
    a.vm(f"buffer_load_dwordx4 {vr(HBM,4)}, v1, {sr(SRD_WS,4)}, {sr(S_X1)} offen sc1", "hm")


def recv_offsets(a):
    T0 = S_T0
    a(f"s_mul_i32 {sr(T0)}, {sr(S_S)}, {4*9216}")
    a(f"s_add_u32 {sr(T0)}, {sr(T0)}, {sr(S_PB)}")
    for i, sx in ((1, S_X1), (2, S_X2), (3, S_X3)):
        a(f"s_xor_b32 {sr(sx)}, {sr(S_S)}, {i}")
        a(f"s_mul_i32 {sr(sx)}, {sr(sx)}, 9216")
        a(f"s_add_u32 {sr(sx)}, {sr(sx)}, {sr(T0)}")


def clears(a, k, B=XB):
    if k == 0:
        recv_offsets(a)
        for r in range(4):
            a(f"v_mov_b32 {vr(B+r)}, -1")
        a(f"v_add_u32 {vr(B+4)}, {sr(S_WL)}, {vr(V_L16)}")
        a(f"v_add_u32 {vr(B+5)}, 8192, {vr(V_L16)}")
        for sx in (S_X1, S_X2, S_X3):
            a.vm(f"buffer_store_dwordx4 {vr(B,4)}, {vr(B+4)}, {sr(SRD_WS,4)}, {sr(sx)} offen sc1", "clr")
    else:
        lk = a.newlabel("L_noclr")
        a(f"s_cmp_lg_u32 {sr(S_SD)}, {sr(S_S)}")
        a(f"s_cbranch_scc1 {lk}")
        a(f"s_cmp_eq_u32 {sr(S_NT5)}, 0")
        a(f"s_cbranch_scc1 {lk}")
        for sx in (S_X1, S_X2, S_X3):
            a.vm(f"buffer_store_dwordx4 {vr(B,4)}, {vr(B+5)}, {sr(SRD_WS,4)}, {sr(sx)} offen sc1", "clr", optional=True)
        a.label(lk)


def omg_load(a):
    a("v_and_b32 v1, 31, v0")
    a("v_lshlrev_b32 v1, 3, v1")
    a.vm(f"buffer_load_dword {vr(V_OMG)}, v1, {sr(SRD_WS,4)}, {sr(S_GO)} offen sc1", "omg")


def h_load(a, st, i):
    a.vm(f"buffer_load_dwordx4 {vr(hreg(st,i),4)}, {vr(V_L16)}, {sr(SRD_WS,4)}, {sr(S_HO)} offen offset:{1024*i}{pol('h','sc1')}", f"h{st}_{i}")
    if i == 1:
        a(f"s_add_u32 {sr(S_HO)}, {sr(S_HO)}, 4096")
        if st == LATE - 1:
            a(f"s_mul_i32 {sr(S_T0)}, {sr(S_S)}, {(NE-12)*1024}")
            a(f"s_sub_u32 {sr(S_HO)}, {sr(S_HO)}, {sr(S_T0)}")
            a(f"s_add_u32 {sr(S_HO)}, {sr(S_HO)}, {(276-68)*1024}")


def zero_acc(a):
    for r in range(80):
        a(f"v_mov_b32 {vr(ACC+r)}, 0")


def main(a, issued, hooks=None):
    hooks = hooks or {}
    l4 = a.newlabel("L_nt4")
    fin = a.newlabel("L_g2fin")
    a(f"s_cmp_eq_u32 {sr(S_NT5)}, 0")
    a(f"s_cbranch_scc1 {l4}")
    saved = a.state()
    for nt in (5, 4):
        a.set_state(saved)
        if nt == 4:
            a.label(l4)
        la = LdsAddr(a, [V_A + t for t in range(nt)], base=MINI)
        wq = [(st, i) for st in range(issued, 20) for i in range(3)]
        allowed = [6]

        def pump():
            if wq and wq[0][0] <= allowed[0]:
                st, i = wq.pop(0)
                w_dma(a, st, i)

        frags = []
        for t in range(nt):
            def reads(dst, tag, t=t):
                a.ds(f"ds_read_b64_tr_b16 {vr(dst,2)}, {vr(V_A+t)}", tag)
                a.ds(f"ds_read_b64_tr_b16 {vr(dst+2,2)}, {vr(V_A+t)} offset:2560", tag)
            f = dict(reads=reads, mfmas=lambda src, t=t: [f"{MF} {vr(ACC+16*t,16)}, {vr(src,4)}, {vr(HBM,4)}, 0"], side=pump)
            if t == 0:
                f["premf"] = lambda: a.wait_vm("hm")
            frags.append(f)
        for st in range(20):
            for i in range(2):
                for t in range(nt):
                    byte = slot(st) * RS + i * 5120

                    def reads(dst, tag, byte=byte, t=t, st=st):
                        if not (0 <= byte - la.base and byte + 2560 - la.base <= 65535):
                            la.move(slot(st) * RS)
                        o = byte - la.base
                        a.ds(f"ds_read_b64_tr_b16 {vr(dst,2)}, {vr(V_A+t)} offset:{o}", tag)
                        a.ds(f"ds_read_b64_tr_b16 {vr(dst+2,2)}, {vr(V_A+t)} offset:{o+2560}", tag)

                    def mfmas(src, st=st, i=i, t=t):
                        acc = vr(ACC + 16 * t, 16)
                        return [f"{MF} {acc}, {vr(src,4)}, {vr(hreg(st,i),4)}, {acc}"]
                    f = dict(reads=reads, mfmas=mfmas)
                    if st % 2 == 0 and st > 0 and i == 0 and t == 0:
                        def pre(st=st):
                            while wq and wq[0][0] <= allowed[0]:
                                pump()
                            a.wait_vm(f"W{st+1}")
                            a("s_barrier")
                            allowed[0] = st + 7
                            ts(a, f"G{st}")
                            if hooks.get("bar"):
                                hooks["bar"](st)
                        f["pre"] = pre
                    if t in (1, 3) or st < 2:
                        f["side"] = pump
                    if t == 0:
                        def premf(st=st, i=i):
                            if st == LATE and i == 0:
                                a.wait_vm("omg")
                                a(f"v_and_b32 {vr(V_OMG)}, 0xffff0000, {vr(V_OMG)}")
                                for r in range(16 * nt):
                                    a(f"v_mul_f32 {vr(ACC+r)}, {vr(ACC+r)}, {vr(V_OMG)}")
                            a.wait_vm(f"h{st}_{i}")
                        f["premf"] = premf
                    if t == nt - 1:
                        def post(st=st, i=i):
                            hooks["post"](st, i, nt)
                            if st + HD < 20:
                                h_load(a, st + HD, i)
                        f["post"] = post
                    frags.append(f)
        frag_pipeline(a, frags, RING, cfg.R, cfg.D)
        ts(a, "Gend" if cfg.fused else 8)
        finish(a, nt, hooks)
        if nt == 5:
            a(f"s_branch {fin}")
    a.label(fin)


def pack8(a, src, dst):
    for r in range(4):
        a(f"v_cvt_pk_bf16_f32 {vr(dst+r)}, {vr(src+2*r)}, {vr(src+2*r+1)}")


def add_piece(a, acc, p, t):
    for r in range(4):
        a(f"v_lshlrev_b32 {vr(t)}, 16, {vr(p+r)}")
        a(f"v_and_b32 {vr(t+1)}, 0xffff0000, {vr(p+r)}")
        a(f"v_add_f32 {vr(acc+2*r)}, {vr(acc+2*r)}, {vr(t)}")
        a(f"v_add_f32 {vr(acc+2*r+1)}, {vr(acc+2*r+1)}, {vr(t+1)}")


def out_store(a, acc, voff, soff):
    pack8(a, acc, acc)
    a(f"v_permlane32_swap_b32 {vr(acc)}, {vr(acc+2)}")
    a(f"v_permlane32_swap_b32 {vr(acc+1)}, {vr(acc+3)}")
    sc = "" if "outplain" in cfg.dbg else " sc1"
    a.vm(f"buffer_store_dwordx4 {vr(acc,4)}, {vr(voff)}, {sr(SRD_OUT,4)}, {sr(soff)} offen{sc}", "out")


def finish(a, nt, hooks):
    T0, T1, T2, T3 = S_T0, S_T0 + 1, S_T0 + 2, S_T0 + 3
    VW, VR_, VO, VF, VD = V_T, V_T + 1, V_T + 2, V_T + 3, V_T + 4
    a(f"s_mul_i32 {sr(T0)}, {sr(S_W)}, 10240")
    a(f"v_add_u32 {vr(VW)}, {sr(T0)}, {vr(V_L16)}")
    a(f"s_xor_b32 {sr(T0)}, {sr(S_W)}, 6")
    a(f"s_mul_i32 {sr(T0)}, {sr(T0)}, 10240")
    a(f"v_add_u32 {vr(VR_)}, {sr(T0)}, {vr(V_L16)}")
    XO = 0
    send = [ACC + 32 + 4 * i for i in range(8)] + ([ACC + 72, ACC + 76] if nt == 5 else [])
    keep = [ACC + 4 * i for i in range(8)] + ([ACC + 64, ACC + 68] if nt == 5 else [])
    for i, r in enumerate(send):
        a.ds(f"ds_write_b128 {vr(VW)}, {vr(r,4)} offset:{XO+i*1024}", "xw")
    a("v_and_b32 v1, 31, v0")
    a(f"v_mul_u32_u24 {vr(VO)}, 1152, v1")
    a("v_lshrrev_b32 v1, 5, v0")
    a(f"v_lshl_add_u32 {vr(VO)}, v1, 4, {vr(VO)}")
    an = "v_and_b32 v1, 3, v0"
    a(an)
    a(f"v_lshlrev_b32 {vr(VF)}, 2, v1")
    a(f"s_mul_i32 {sr(T0)}, {sr(S_S)}, 9216")
    a(f"s_add_u32 {sr(T0)}, {sr(T0)}, {sr(S_PB)}")
    a(f"s_add_u32 {sr(T1)}, {sr(T0)}, {sr(S_WL)}")
    for i, sx in ((1, S_X1), (2, S_X2), (3, S_X3)):
        a(f"s_xor_b32 {sr(sx)}, {sr(S_S)}, {i}")
        a(f"s_mul_i32 {sr(sx)}, {sr(sx)}, {4*9216}")
        a(f"s_add_u32 {sr(sx)}, {sr(sx)}, {sr(T1)}")
    a(f"s_mul_i32 {sr(T2)}, {sr(S_SD)}, {4*9216}")
    a(f"s_add_u32 {sr(T2)}, {sr(T2)}, {sr(T0)}")
    a(f"s_add_u32 {sr(T2)}, {sr(T2)}, 8192")
    hooks["presend"]()
    a.wait_ds_all()
    a("s_barrier")
    order = [2, 3, 4, 5, 6, 7] + ([8, 9] if nt == 5 else []) + [0, 1]
    for i in order:
        a.ds(f"ds_read_b128 {vr(XB+4*i,4)}, {vr(VR_)} offset:{XO+i*1024}", f"xr{i}")

    def red(i):
        a.wait_ds(f"xr{i}")
        for r in range(4):
            a(f"v_add_f32 {vr(keep[i]+r)}, {vr(keep[i]+r)}, {vr(XB+4*i+r)}")
    for c, sx in ((1, S_X1), (2, S_X2), (3, S_X3)):
        red(2 * c)
        red(2 * c + 1)
        pack8(a, ACC + 8 * c, ACC + 8 * c)
        a.vm(f"buffer_store_dwordx4 {vr(ACC+8*c,4)}, {vr(V_L16)}, {sr(SRD_WS,4)}, {sr(sx)} offen sc1", "ps")
    if nt == 5:
        red(8)
        red(9)
        lk = a.newlabel("L_keep")
        a(f"s_cmp_eq_u32 {sr(S_SD)}, {sr(S_S)}")
        a(f"s_cbranch_scc1 {lk}")
        pack8(a, ACC + 64, ACC + 64)
        a.vm(f"buffer_store_dwordx4 {vr(ACC+64,4)}, {vr(V_L16)}, {sr(SRD_WS,4)}, {sr(T2)} offen sc1", "ps", optional=True)
        a.label(lk)
    red(0)
    red(1)
    recv_offsets(a)
    a(f"v_add_u32 {vr(VW)}, {sr(S_WL)}, {vr(V_L16)}")
    a(f"v_add_u32 {vr(VR_)}, 8192, {vr(V_L16)}")
    if cfg.fused:
        ts(a, "Psent")
        recv(a, VW, XB + 4, ACC, VO, S_OUT, first=True, tsk="Precv")
        if nt == 5:
            lk = a.newlabel("L_nokeep2")
            a(f"s_cmp_lg_u32 {sr(S_SD)}, {sr(S_S)}")
            a(f"s_cbranch_scc1 {lk}")
            recv(a, VR_, XB + 20, ACC + 64, VO, S_OUTS)
            a.label(lk)
        ts(a, "end")
        return


def recv(a, voff, buf, acc, VO, sout, first=False, tsk=None):
    loop = a.newlabel("L_rl")
    done = a.newlabel("L_rd")
    t = XB + 32
    a(f"s_mov_b32 {sr(sync.S_CNT)}, {sync.SPIN}")
    a.label(loop)
    for i, sx in enumerate((S_X1, S_X2, S_X3)):
        a(f"buffer_load_dwordx4 {vr(buf+4*i,4)}, {vr(voff)}, {sr(SRD_WS,4)}, {sr(sx)} offen sc1")
    a.wait_vm_all()
    a(f"v_max3_u32 {vr(t)}, {vr(buf)}, {vr(buf+1)}, {vr(buf+2)}")
    a(f"v_max3_u32 {vr(t+1)}, {vr(buf+3)}, {vr(buf+4)}, {vr(buf+5)}")
    a(f"v_max3_u32 {vr(t+2)}, {vr(buf+6)}, {vr(buf+7)}, {vr(buf+8)}")
    a(f"v_max3_u32 {vr(t)}, {vr(t)}, {vr(buf+9)}, {vr(buf+10)}")
    a(f"v_max3_u32 {vr(t+1)}, {vr(t+1)}, {vr(buf+11)}, {vr(t+2)}")
    a(f"v_max_u32 {vr(t)}, {vr(t)}, {vr(t+1)}")
    a(f"v_cmp_eq_u32 vcc, -1, {vr(t)}")
    a("s_nop 4")
    a(f"s_cbranch_vccz {done}")
    a(f"s_sub_u32 {sr(sync.S_CNT)}, {sr(sync.S_CNT)}, 1")
    a(f"s_cmp_lg_u32 {sr(sync.S_CNT)}, 0")
    a(f"s_cbranch_scc1 {loop}")
    a.label(done)
    if tsk:
        ts(a, tsk)
    for i in range(3):
        add_piece(a, acc, buf + 4 * i, t)
    out_store(a, acc, VO, sout)
```

```python
from common import *

FL_QKV = FLAG_OFF
FL_H = FLAG_OFF + 0x2000
FL_O = FLAG_OFF + 0x4000
FL_H2 = FLAG_OFF + 0x8000
FL_P = FLAG_OFF + 0x6000
SPIN = 30000
S_CNT = S_T0 + 7


def nonce_publish(a):
    lab = a.newlabel("L_np")
    a(f"s_or_b32 {sr(S_T0)}, s2, {sr(S_W)}")
    a(f"s_cmp_lg_u32 {sr(S_T0)}, 0")
    a(f"s_cbranch_scc1 {lab}")
    a.wait_ds_all()
    a(f"s_memrealtime {sr(S_T0,2)}")
    a("s_waitcnt lgkmcnt(0)")
    a(f"s_or_b32 {sr(S_T0)}, {sr(S_T0)}, 1")
    a(f"v_mov_b32 v1, {sr(S_T0)}")
    a("s_mov_b64 exec, 1")
    a.vm(f"buffer_store_dword v1, off, {sr(SRD_DBG,4)}, 0 sc1", "nonce_st", optional=True)
    a("s_mov_b64 exec, -1")
    a.label(lab)


def nonce_request(a, vreg):
    a.vm(f"buffer_load_dword {vr(vreg)}, off, {sr(SRD_DBG,4)}, 0 sc1", "nonce")
    a.nonce_req = True


def nonce_get(a, vreg):
    done = a.newlabel("L_ng")
    loop = a.newlabel("L_ngl")
    assert a.nonce_req
    a.nonce_req = 2
    a.wait_vm("nonce")
    a(f"s_mov_b32 {sr(S_CNT)}, {SPIN}")
    a.label(loop)
    a(f"v_readfirstlane_b32 {sr(S_NONCE)}, {vr(vreg)}")
    a(f"s_cmp_lg_u32 {sr(S_NONCE)}, 0")
    a(f"s_cbranch_scc1 {done}")
    a(f"buffer_load_dword {vr(vreg)}, off, {sr(SRD_DBG,4)}, 0 sc1")
    a("s_waitcnt vmcnt(0)")
    a(f"s_sub_u32 {sr(S_CNT)}, {sr(S_CNT)}, 1")
    a(f"s_cmp_lg_u32 {sr(S_CNT)}, 0")
    a(f"s_cbranch_scc1 {loop}")
    a.label(done)


def flag_store(a, soff, vtmp, imm=0):
    a(f"v_mov_b32 {vr(vtmp)}, {sr(S_NONCE)}")
    a("s_mov_b64 exec, 1")
    a.vm(f"buffer_store_dword {vr(vtmp)}, off, {sr(SRD_WS,4)}, {sr(soff)} offset:{imm} sc1", "flag", optional=True)
    a("s_mov_b64 exec, -1")


def poll_request(a, voff, soff, vdat, tag):
    a.vm(f"buffer_load_dword {vr(vdat)}, {vr(voff)}, {sr(SRD_WS,4)}, {sr(soff)} offen sc1", tag)


def poll_finish(a, voff, soff, vdat, tag):
    done = a.newlabel("L_pd")
    loop = a.newlabel("L_pl")
    a.wait_vm(tag)
    a(f"s_mov_b32 {sr(S_CNT)}, {SPIN}")
    a.label(loop)
    a(f"v_cmp_ne_u32 vcc, {sr(S_NONCE)}, {vr(vdat)}")
    a("s_nop 4")
    a(f"s_cbranch_vccz {done}")
    a(f"buffer_load_dword {vr(vdat)}, {vr(voff)}, {sr(SRD_WS,4)}, {sr(soff)} offen sc1")
    a("s_waitcnt vmcnt(0)")
    a(f"s_sub_u32 {sr(S_CNT)}, {sr(S_CNT)}, 1")
    a(f"s_cmp_lg_u32 {sr(S_CNT)}, 0")
    a(f"s_cbranch_scc1 {loop}")
    a.label(done)
```

```python
import sys, os
sys.path.insert(0, os.path.dirname(os.path.abspath(__file__)))
from common import *
import phase1

HERE = os.path.dirname(os.path.abspath(__file__))
HEADER = open(os.path.join(HERE, "..", "cdna_kernels", NAME + ".s.ref")).read().split("; Override launch")[0]


def kd(name, vgpr=256, sgpr=102):
    return f""".p2align 6
.amdhsa_kernel {name}
  .amdhsa_next_free_vgpr {vgpr}
  .amdhsa_next_free_sgpr {sgpr}
  .amdhsa_accum_offset {vgpr}
  .amdhsa_group_segment_fixed_size 0
  .amdhsa_kernarg_size 80
  .amdhsa_user_sgpr_count 2
  .amdhsa_user_sgpr_kernarg_segment_ptr 1
  .amdhsa_system_sgpr_workgroup_id_x 1
.end_amdhsa_kernel
"""


def kernel(name, body):
    a = Asm()
    a.nlabel = kernel.nl
    end = f"L_end_{name}"
    prologue(a, end)
    body(a)
    a.label(end)
    a("s_endpgm")
    kernel.nl = a.nlabel
    return f".globl {name}\n.p2align 8\n.type {name},@function\n{name}:\n" + a.text()


kernel.nl = 0


def build(kernels):
    out = HEADER
    if len(kernels) == 1 and kernels[0][0] == NAME + "_kernel":
        out += f"; @launch grid=(256,1,1) block=(512,1,1) lds={LDS_BYTES}\n"
    else:
        for name, _ in kernels:
            out += f"; @launch kernel={name} grid=(256,1,1) block=(512,1,1) lds={LDS_BYTES}\n"
    out += '.amdgcn_target "amdgcn-amd-amdhsa--gfx950"\n.text\n'
    for name, body in kernels:
        out += kernel(name, body)
    out += '.section .rodata,"a"\n'
    for name, _ in kernels:
        out += kd(name)
    return out


if __name__ == "__main__":
    import argparse
    ap = argparse.ArgumentParser()
    ap.add_argument("-o", default=os.path.join(HERE, "..", "cdna_kernels", NAME + ".s"))
    ap.add_argument("--ts", action="store_true")
    ap.add_argument("--mode", default="fused")
    ap.add_argument("--phases", default="1234")
    ap.add_argument("--D", type=int, default=3)
    ap.add_argument("--R", type=int, default=5)
    ap.add_argument("--dbg", default="")
    ap.add_argument("--tsn", default="start,A0,A4,Aend,Bend,P1end,Tstart,Tmid,Tend,G0,G2,G10,Gend,Psent,Precv,end")
    args = ap.parse_args()
    cfg.tsnames = args.tsn.split(",")
    cfg.ts = args.ts
    cfg.D, cfg.R = args.D, args.R
    cfg.dbg = set(args.dbg.split(","))
    kernels = []
    if args.mode == "multi":
        def k1(a):
            phase1.phase1(a)
            ts_store(a, 0)
        kernels.append(("p1_kernel", k1))
        if "2" in args.phases:
            import phase2

            def k2(a):
                phase2.phase2_standalone(a)
                ts_store(a, 1)
            kernels.append(("p2_kernel", k2))
        if "3" in args.phases:
            import phase3

            def k3(a):
                phase3.phase3_standalone(a)
                ts_store(a, 2)
            kernels.append(("p3_kernel", k3))
        if "4" in args.phases:
            import phase3

            def k4(a):
                phase3.phase4_standalone(a)
                ts_store(a, 3)
            kernels.append(("p4_kernel", k4))
    else:
        cfg.fused = True
        import fused, bench
        kernels.append((NAME + "_kernel", bench.body if args.mode == "bench" else fused.body))
    txt = build(kernels)
    if cfg.ts and cfg.fused:
        txt = "; tsnames " + args.tsn + "\n" + txt
    open(args.o, "w").write(txt)
    print("wrote", args.o)
```
